```python
import torch

def _softmax(x, axis=-1):
    return torch.softmax(x, dim=axis)
def _gelu(x):
    return torch.nn.functional.gelu(x, approximate="tanh")
def _silu(x):
    return torch.nn.functional.silu(x)
def _sigmoid(x):
    return torch.sigmoid(x)
def _layernorm(x, axis=-1, eps=1e-5):
    m = x.mean(dim=axis, keepdim=True)
    v = x.var(dim=axis, keepdim=True, unbiased=False)
    return (x - m) / torch.sqrt(v + eps)
def _scatter_add(tgt, idx, src, axis=0):
    return tgt.clone().index_add_(axis, idx, src)
def _segment_sum(src, seg, n):
    out = torch.zeros((n,) + src.shape[1:], dtype=src.dtype)
    return out.index_add_(0, seg, src)
def _pad(x, pw):
    flat = tuple(v for pair in reversed(pw) for v in pair)
    return torch.nn.functional.pad(x, flat)

kernel_name = 'concat_heads__linear_kernel_hedgehog__ssm_conv_s4__prompt'

def setup_inputs():

    _w = (lambda a: (lambda t: t.to(torch.bfloat16) if t.is_floating_point() else t)(torch.as_tensor(a)))
    def _A_setup():
        B, S, D, H = 1, 2048, 512, 32
        Dh = D // H
        return {
            "x": _w((lambda *s: torch.randn(*s, dtype=torch.bfloat16) * 0.4)(B, S, D)),
            "wqkv": _w((lambda *s: torch.randn(*s, dtype=torch.bfloat16) * 0.4)(D, 3 * D)),
            "w_phi": _w((lambda *s: torch.randn(*s, dtype=torch.bfloat16) * 0.4)(H, Dh, Dh) * (Dh ** -0.5)),
            "wo": _w((lambda *s: torch.randn(*s, dtype=torch.bfloat16) * 0.05)(D, D)),
        }
    _A_in = _A_setup()

    def _B_setup():
        B, L, D, N = 1, 2048, 512, 128
        A_re = -(lambda _x: torch.exp(torch.as_tensor(_x)))((lambda *s: torch.randn(*s, dtype=torch.bfloat16) * 6.4)(D, N))
        A_im = torch.pi * (lambda *s: torch.randn(*s, dtype=torch.bfloat16) * 0.1)(D, N)
        B_re = (lambda *s: torch.randn(*s, dtype=torch.bfloat16) * 0.2)(D, N)
        B_im = (lambda *s: torch.randn(*s, dtype=torch.bfloat16) * 0.2)(D, N)
        C_re = (lambda *s: torch.randn(*s, dtype=torch.bfloat16) * 0.2)(D, N)
        C_im = (lambda *s: torch.randn(*s, dtype=torch.bfloat16) * 0.2)(D, N)
        log_dt = (lambda *s: torch.randn(*s, dtype=torch.bfloat16) * 0.1)(D) * 0.5 - 4.0
        Dskip = (lambda *s: torch.randn(*s, dtype=torch.bfloat16) * 0.1)(D)
        return {
            "u": _w((lambda *s: torch.randn(*s, dtype=torch.bfloat16) * 0.05)(B, L, D)),
            "A_re": _w(A_re),
            "A_im": _w(A_im),
            "B_re": _w(B_re),
            "B_im": _w(B_im),
            "C_re": _w(C_re),
            "C_im": _w(C_im),
            "log_dt": _w(log_dt),
            "Dskip": _w(Dskip),
        }
    _B_in = _B_setup()

    return {
        "A_x": _A_in["x"],
        "A_wqkv": _A_in["wqkv"],
        "A_w_phi": _A_in["w_phi"],
        "A_wo": _A_in["wo"],
        "B_u": _B_in["u"],
        "B_A_re": _B_in["A_re"],
        "B_A_im": _B_in["A_im"],
        "B_B_re": _B_in["B_re"],
        "B_B_im": _B_in["B_im"],
        "B_C_re": _B_in["C_re"],
        "B_C_im": _B_in["C_im"],
        "B_log_dt": _B_in["log_dt"],
        "B_Dskip": _B_in["Dskip"],
    }

def reference(A_x, A_wqkv, A_w_phi, A_wo, B_u, B_A_re, B_A_im, B_B_re, B_B_im, B_C_re, B_C_im, B_log_dt, B_Dskip):
    def _A_ref(x, wqkv, w_phi, wo):
        B, S, D = x.shape
        H = 32; Dh = D // H
        qkv = (lambda x, *d: x.permute(*d))((x @ wqkv).reshape(B, S, 3, H, Dh), 2, 0, 3, 1, 4)
        q, k, v = qkv[0], qkv[1], qkv[2]
        pq = torch.einsum("bhsd,hdf->bhsf", q, w_phi)
        pk = torch.einsum("bhsd,hdf->bhsf", k, w_phi)
        phi_q = torch.concatenate([_softmax(pq, axis=-1), _softmax(-pq, axis=-1)], axis=-1)
        phi_k = torch.concatenate([_softmax(pk, axis=-1), _softmax(-pk, axis=-1)], axis=-1)
        kv = torch.einsum("bhsf,bhsd->bhfd", phi_k, v)
        z  = torch.einsum("bhsf->bhf", phi_k)
        num = torch.einsum("bhqf,bhfd->bhqd", phi_q, kv)
        den = torch.einsum("bhqf,bhf->bhq", phi_q, z)[..., None] + 1e-6
        o = num / den
        return (lambda x, *d: x.permute(*d))(o, 0, 2, 1, 3).reshape(B, S, D) @ wo

    def _B_ref(u, A_re, A_im, B_re, B_im, C_re, C_im, log_dt, Dskip):
        Bsz, L, D = u.shape
        dt = torch.exp(log_dt)[:, None]
        A = A_re + 1j * A_im
        Bc = B_re + 1j * B_im
        Cc = C_re + 1j * C_im
        logdA = dt * A
        dB = dt * Bc
        l = (lambda x, dt: x.to(dt))(torch.arange(L), A_re.dtype)
        P = torch.exp(logdA[:, :, None] * l[None, None, :])
        K = torch.einsum("dn,dnl,dn->dl", Cc, P, dB).real
        L2 = 2 * L
        Kp = _pad(K, ((0, 0), (0, L)))
        up = (lambda x, *d: x.permute(*d))(u, 0, 2, 1)
        up = _pad(up, ((0, 0), (0, 0), (0, L)))
        Kf = (lambda x, axes=(-2,-1): torch.fft.rfft2(x.float(), dim=axes))(Kp[:, None, :], axes=(-2, -1))
        Uf = (lambda x, axes=(-2,-1): torch.fft.rfft2(x.float(), dim=axes))(up[:, :, None, :], axes=(-2, -1))
        Yf = Uf * Kf[None, :, :, :]
        y = (lambda x, s, axes=(-2,-1): torch.fft.irfft2(x, s=s, dim=axes).to(torch.bfloat16))(Yf, (1, L2), axes=(-2, -1))[:, :, 0, :L]
        y = (lambda x, *d: x.permute(*d))(y, 0, 2, 1) + u * Dskip[None, None, :]
        return y

    a = _A_ref(A_x, A_wqkv, A_w_phi, A_wo)
    b = _B_ref(B_u, B_A_re, B_A_im, B_B_re, B_B_im, B_C_re, B_C_im, B_log_dt, B_Dskip)
    return torch.concatenate([a, b], axis=-1)
```

```python
NAME = "concat_heads__linear_kernel_hedgehog__ssm_conv_s4__prompt"

class Asm:
    def __init__(self):
        self.lines = []
        self.nlabel = 0
    def __call__(self, s):
        for l in s.strip("\n").split("\n"):
            self.lines.append("    " + l.strip())
    def label(self, name):
        self.lines.append(name + ":")
    def newlabel(self, base="L"):
        self.nlabel += 1
        return f".{base}_{self.nlabel}"
    def comment(self, s):
        self.lines.append("    ; " + s)
    def text(self):
        return "\n".join(self.lines) + "\n"

def kernel_text(name, body, vgpr=256, sgpr=102, accum=None, extra_kd=""):
    if accum is None:
        accum = min(256, (vgpr + 3)//4*4)
    code = f""".globl {name}
.p2align 8
.type {name},@function
{name}:
{body}"""
    kd = f""".p2align 6
.amdhsa_kernel {name}
  .amdhsa_next_free_vgpr {vgpr}
  .amdhsa_next_free_sgpr {sgpr}
  .amdhsa_accum_offset {accum}
  .amdhsa_group_segment_fixed_size 0
  .amdhsa_kernarg_size 128
  .amdhsa_user_sgpr_count 2
  .amdhsa_user_sgpr_kernarg_segment_ptr 1
  .amdhsa_system_sgpr_workgroup_id_x 1
{extra_kd}.end_amdhsa_kernel
"""
    return code, kd

def file_text(launches, kernels, header=""):
    s = header
    for (kn, g, b, lds) in launches:
        if kn is None:
            s += f"; @launch grid=({g},1,1) block=({b},1,1) lds={lds}\n"
        else:
            s += f"; @launch kernel={kn} grid=({g},1,1) block=({b},1,1) lds={lds}\n"
    s += '.amdgcn_target "amdgcn-amd-amdhsa--gfx950"\n.text\n'
    for code, kd in kernels:
        s += code
    s += '.section .rodata,"a"\n'
    for code, kd in kernels:
        s += kd
    return s

import re
_TRANS = ("v_exp_f32","v_log_f32","v_rcp_f32","v_rsq_f32","v_sqrt_f32","v_sin_f32","v_cos_f32","v_rcp_iflag_f32")
def _regs(tok):
    tok = tok.strip()
    neg = tok.lstrip("-|").rstrip("|")
    m = re.fullmatch(r"([vsa])(\d+)", neg)
    if m: return [(m.group(1), int(m.group(2)))]
    m = re.fullmatch(r"([vsa])\[(\d+):(\d+)\]", neg)
    if m: return [(m.group(1), i) for i in range(int(m.group(2)), int(m.group(3))+1)]
    if neg == "vcc": return [("s", 106), ("s", 107)]
    if neg == "vcc_lo": return [("s", 106)]
    if neg == "vcc_hi": return [("s", 107)]
    if neg == "exec": return [("s", 126), ("s", 127)]
    if neg == "m0": return [("s", 124)]
    return []
def _split_ops(s):
    out, depth, cur = [], 0, ""
    for ch in s:
        if ch == "[": depth += 1
        if ch == "]": depth -= 1
        if ch == "," and depth == 0:
            out.append(cur); cur = ""
        else: cur += ch
    out.append(cur)
    res = []
    for o in out:
        o = o.strip()
        res.append(o)
    mods = ""
    if res:
        parts = res[-1].split(None, 1)
        if len(parts) == 2:
            res[-1] = parts[0]; mods = parts[1]
    return res, mods
def _passes(mn):
    if "32x32x16" in mn or "32x32x8" in mn: return 8
    if "16x16x32" in mn or "16x16x16" in mn: return 4
    raise ValueError(mn)
_T_AB = {4: 8, 8: 12}; _T_RD = {4: 8, 8: 12}; _T_CO = {4: 6, 8: 10}; _T_WARC = {4: 3, 8: 7}

def hazard_pass(lines, verbose=False):
    out = []
    pos = 0
    valu_w, trans_w, mfma_w, mfma_c, valu_sw, st_data = {}, {}, {}, {}, {}, {}
    m0_w = -100
    added = 0
    for line in lines:
        t = line.strip()
        if not t or t.startswith(";") or t.endswith(":") or t.startswith("."):
            out.append(line); continue
        code = t.split(";")[0].strip()
        sp = code.split(None, 1)
        mn = sp[0]; ops, mods = _split_ops(sp[1]) if len(sp) > 1 else ([], "")
        R = [_regs(o) for o in ops]
        need = pos
        def req(p, ws):
            nonlocal need
            need = max(need, p + 1 + ws)
        is_mfma = mn.startswith("v_mfma")
        is_valu = mn.startswith("v_") and not is_mfma
        is_ds = mn.startswith("ds_")
        is_vm = mn.startswith("global_") or mn.startswith("buffer_") or mn.startswith("flat_")
        dst, src = [], []
        if is_mfma:
            D, Aop, Bop, C = R[0], R[1], R[2], R[3]
            for r in Aop + Bop + C:
                if r in valu_w: req(valu_w[r], 2)
            for r in Aop + Bop:
                if r in mfma_w: req(mfma_w[r][0], _T_AB[mfma_w[r][1]])
            for r in C:
                if r in mfma_w:
                    p, ps, rng = mfma_w[r]
                    if not (rng == tuple(C) and ps == _passes(mn)): req(p, _T_CO[ps])
            for r in D:
                if r in mfma_w and r not in C:
                    p, ps, rng = mfma_w[r]
                    req(p, _T_CO[ps])
        elif is_valu:
            nd = 1
            if "_co_" in mn and not mn.startswith("v_cmp"): nd = 2
            if "permlane" in mn and "swap" in mn:
                dst = R[0] + R[1]; src = R[0] + R[1]
            else:
                for i in range(nd): dst += R[i]
                for i in range(nd, len(R)): src += R[i]
                if mn.startswith(("v_fmac", "v_mac", "v_pk_fmac", "v_dot2c")) or "dpp" in mn or "row_" in mods or "quad_perm" in mods or "d16" in mn: src += R[0]
            istrans = any(mn.startswith(x) for x in _TRANS)
            isdpp = "dpp" in mn or "row_" in mods or "quad_perm" in mods or "wave_" in mods
            for r in src:
                if r[0] == "v":
                    if r in trans_w and not istrans: req(trans_w[r], 1)
                    if r in mfma_w: req(mfma_w[r][0], _T_RD[mfma_w[r][1]])
                    if r in valu_w:
                        if "permlane" in mn or isdpp: req(valu_w[r], 2)
                        if mn.startswith(("v_readfirstlane", "v_readlane")): req(valu_w[r], 1)
                elif r[0] == "s":
                    if r in valu_sw: req(valu_sw[r], 4 if mn.startswith(("v_readlane","v_writelane","v_div_fmas")) else 2)
            for r in dst:
                if r[0] == "v":
                    if r in mfma_w: req(mfma_w[r][0], _T_RD[mfma_w[r][1]])
                    if r in mfma_c: req(mfma_c[r][0], _T_WARC[mfma_c[r][1]])
                    if r in st_data: req(st_data[r], 2)
        elif is_ds or is_vm:
            islds = is_vm and ("lds" in mn or re.search(r"\blds\b", mods))
            isload = ("read" in mn or "load" in mn) and not islds
            isatomic_ret = "atomic" in mn and "sc0" in mods or "_rtn" in mn
            if isload or isatomic_ret:
                dst = R[0]; rest = R[1:]
                if mn.startswith("buffer_atomic"): rest = R
            else:
                rest = R
            for x in rest: src += x
            for r in src:
                if r[0] == "v" and r in mfma_w: req(mfma_w[r][0], _T_RD[mfma_w[r][1]])
                if r[0] == "s" and r in valu_sw: req(valu_sw[r], 5)
            for r in dst:
                if r in mfma_w: req(mfma_w[r][0], _T_RD[mfma_w[r][1]])
                if r in st_data: req(st_data[r], 1)
            if islds or "addtid" in mn: req(m0_w, 1)
        if need > pos:
            n = need - pos
            added += n
            while n > 0:
                k = min(n, 16)
                out.append(f"    s_nop {k-1}")
                n -= k
            pos = need
        out.append(line)
        if is_mfma:
            ps = _passes(mn)
            for r in R[0]:
                mfma_w[r] = (pos, ps, tuple(R[0])); valu_w.pop(r, None); trans_w.pop(r, None)
            for r in R[3]: mfma_c[r] = (pos, ps)
        elif is_valu:
            istrans = any(mn.startswith(x) for x in _TRANS)
            for r in dst:
                if r[0] == "v":
                    valu_w[r] = pos; mfma_w.pop(r, None)
                    if istrans: trans_w[r] = pos
                    else: trans_w.pop(r, None)
                else: valu_sw[r] = pos
        elif is_ds or is_vm:
            for r in dst:
                valu_w.pop(r, None); trans_w.pop(r, None); mfma_w.pop(r, None)
            if is_vm and ("store" in mn) and ("x4" in mn or "x3" in mn):
                data = R[1] if mn.startswith("global_") else R[0]
                for r in data: st_data[r] = pos
        else:
            if R and R[0] and mn.startswith("s_") and not mn.startswith(("s_cmp","s_cbranch","s_waitcnt","s_nop","s_branch","s_bitcmp")):
                for r in R[0]:
                    valu_sw.pop(r, None)
                    if r == ("s", 124): m0_w = pos
        if mn == "s_nop": pos += int(ops[0], 0) + 1
        else: pos += 1
    if verbose: print("hazard pass added", added, "wait states")
    return out
def _text(self):
    return "\n".join(hazard_pass(self.lines, verbose=True)) + "\n"
Asm.text = _text
```

```python
import struct, math
from asmlib import *

def f32bits(x): return struct.unpack("<I", struct.pack("<f", x))[0]
LOG2E = f32bits(math.log2(math.e))

KVOFF = 0x000000
OOFF = 0x100000
SCR = 32768
PVB = 32768
PVS = 224
KVI = 16384
KVS = 80
def slot(i): return 8192*i if i < 4 else 49152 + 8192*(i-4)

class VM:
    def __init__(self, A): self.A = A; self.ops = []
    def issue(self, tag, ins):
        self.A(ins); self.ops.append(tag)
    def wait(self, tag, extra=""):
        idx = max(i for i, t in enumerate(self.ops) if t == tag)
        n = len(self.ops) - 1 - idx
        assert n <= 63
        self.A(f"s_waitcnt vmcnt({n}){extra}")
    def drain(self):
        self.A("s_waitcnt vmcnt(0)"); self.ops = []

def emit_softmax(A, P, E, OUT, T, sL):
    mx, mn, t0, t1, s0, s1 = T
    A(f"v_max3_f32 v{mx}, v{P}, v{P+1}, v{P+2}")
    A(f"v_min3_f32 v{mn}, v{P}, v{P+1}, v{P+2}")
    A(f"v_max3_f32 v{t0}, v{P+3}, v{P+4}, v{P+5}")
    A(f"v_min3_f32 v{t1}, v{P+3}, v{P+4}, v{P+5}")
    for i in (6, 10):
        A(f"v_max3_f32 v{mx}, v{mx}, v{P+i}, v{P+i+1}")
        A(f"v_min3_f32 v{mn}, v{mn}, v{P+i}, v{P+i+1}")
        A(f"v_max3_f32 v{t0}, v{t0}, v{P+i+2}, v{P+i+3}")
        A(f"v_min3_f32 v{t1}, v{t1}, v{P+i+2}, v{P+i+3}")
    A(f"v_max3_f32 v{mx}, v{mx}, v{P+14}, v{P+15}")
    A(f"v_min3_f32 v{mn}, v{mn}, v{P+14}, v{P+15}")
    A(f"v_max_f32 v{mx}, v{mx}, v{t0}")
    A(f"v_min_f32 v{mn}, v{mn}, v{t1}")
    A(f"v_mul_f32_e64 v{mx}, -v{mx}, {sL}")
    A(f"v_mul_f32 v{mn}, {sL}, v{mn}")
    for i in range(16):
        A(f"v_fma_f32 v{E+i}, v{P+i}, {sL}, v{mx}")
        A(f"v_fma_f32 v{E+16+i}, -v{P+i}, {sL}, v{mn}")
        if i >= 1:
            A(f"v_exp_f32 v{E+i-1}, v{E+i-1}")
            A(f"v_exp_f32 v{E+16+i-1}, v{E+16+i-1}")
        if i >= 3:
            j = i - 2
            if j == 1:
                A(f"v_add_f32 v{s0}, v{E}, v{E+1}")
                A(f"v_add_f32 v{s1}, v{E+16}, v{E+17}")
            else:
                A(f"v_add_f32 v{s0}, v{s0}, v{E+j}")
                A(f"v_add_f32 v{s1}, v{s1}, v{E+16+j}")
    A(f"v_exp_f32 v{E+15}, v{E+15}")
    A(f"v_exp_f32 v{E+31}, v{E+31}")
    A(f"v_add_f32 v{s0}, v{s0}, v{E+14}")
    A(f"v_add_f32 v{s1}, v{s1}, v{E+30}")
    A(f"v_add_f32 v{s0}, v{s0}, v{E+15}")
    A(f"v_add_f32 v{s1}, v{s1}, v{E+31}")
    A(f"v_rcp_f32 v{s0}, v{s0}")
    A(f"v_rcp_f32 v{s1}, v{s1}")
    outs = []
    for h, s in ((0, s0), (1, s1)):
        for i in range(0, 16, 2):
            a, b = E+16*h+i, E+16*h+i+1
            A(f"v_mul_f32 v{a}, v{a}, v{s}")
            A(f"v_mul_f32 v{b}, v{b}, v{s}")
            A(f"v_cvt_pk_bf16_f32 v{OUT+8*h+i//2}, v{a}, v{b}")

def emit_A(a, stamps=None, CL=3, dbg=None, prio=None):
    A = a
    nst = [0]
    def stamp():
        if stamps:
            i = nst[0]; nst[0] += 1
            A(f"s_memtime s[{streg(i)}:{streg(i)+1}]")
    def streg(i): return 80+2*i if i < 8 else 20+2*(i-8)
    stamp()
    if prio is not None: A(f"s_setprio {prio}")
    A("s_load_dwordx8 s[4:11], s[0:1], 0")
    A("s_load_dwordx2 s[12:13], s[0:1], 104")
    A("s_load_dwordx4 s[16:19], s[0:1], 112")
    A("v_and_b32 v1, 63, v0")
    A("v_lshrrev_b32 v2, 6, v0")
    A("s_and_b32 s40, s2, 7")
    A("s_lshr_b32 s41, s2, 3")
    A("v_readfirstlane_b32 s36, v2")
    A("s_and_b32 s42, s41, 3")
    A("s_lshr_b32 s43, s41, 2")
    A("s_and_b32 s37, s40, 3")
    A("s_lshl_b32 s37, s37, 2")
    A("s_add_u32 s37, s37, s42")
    A("s_lshr_b32 s38, s40, 2")
    A("s_lshl_b32 s38, s38, 3")
    A("s_add_u32 s38, s38, s43")
    A("s_lshl_b32 s39, s42, 1")
    A("s_add_u32 s39, s39, s43")
    A("s_and_b32 s39, s39, 7")
    A("v_lshrrev_b32 v20, 3, v1")
    A("v_and_b32 v21, 7, v1")
    A("v_lshrrev_b32 v22, 4, v1")
    A("v_and_b32 v23, 3, v1")
    A("v_bfe_u32 v24, v1, 2, 2")
    A("v_lshrrev_b32 v25, 5, v1")
    A("v_and_b32 v26, 31, v1")
    A("v_and_b32 v27, 15, v1")
    A("s_lshl_b32 s40, s37, 17")
    A("s_lshl_b32 s41, s36, 15")
    A("s_add_u32 s40, s40, s41")
    A("v_lshlrev_b32 v2, 10, v20")
    A("v_lshl_add_u32 v2, v21, 4, v2")
    A("v_add_u32 v2, s40, v2")
    A("s_mul_i32 s40, s36, %d" % (16*3072))
    A("s_lshl_b32 s41, s38, 6")
    A("s_add_u32 s40, s40, s41")
    A("s_add_u32 s40, s40, 1024")
    A("v_mul_u32_u24 v3, 3072, v20")
    A("v_xor_b32 v28, v24, v22")
    A("v_and_b32 v28, 1, v28")
    A("v_lshl_add_u32 v3, v28, 10, v3")
    A("v_lshl_add_u32 v3, v23, 4, v3")
    A("v_add_u32 v3, s40, v3")
    A("s_lshl_b32 s40, s38, 10")
    A("v_lshl_add_u32 v29, v1, 4, s40")
    A("s_lshl_b32 s44, s36, 12")
    A(f"s_add_u32 s44, s44, {SCR}")
    A("s_lshl_b32 s45, s36, 11")
    A("s_waitcnt lgkmcnt(0)")
    for (d, p, n) in ((20, 4, 2048*1024), (24, 6, 512*3072), (28, 10, 512*1024), (32, 8, 32*512)):
        A(f"s_mov_b32 s{d}, s{p}")
        A(f"s_mov_b32 s{d+1}, s{p+1}")
        A(f"s_mov_b32 s{d+2}, {n}")
        A(f"s_mov_b32 s{d+3}, 0x00020000")
    vm = VM(A)
    A("s_mov_b32 m0, s44")
    vm.issue("wphi", "buffer_load_dwordx4 v29, s[32:35], 0 offen lds")
    X = 128
    def clears():
        A("s_lshl_b32 s40, s38, 2")
        A("s_add_u32 s40, s40, s36")
        A("s_mul_i32 s40, s40, 12288")
        A("s_lshl_b32 s41, s37, 8")
        A("s_add_u32 s40, s40, s41")
        A(f"s_add_u32 s40, s40, {KVOFF}")
        A("v_min_u32 v28, 2, v22")
        A("v_lshlrev_b32 v28, 12, v28")
        A("v_lshl_add_u32 v28, v27, 4, v28")
        A("v_add_u32 v28, s40, v28")
        A("s_lshl_b32 s40, s37, 17")
        A("s_lshl_b32 s41, s36, 15")
        A("s_add_u32 s40, s40, s41")
        A("s_lshl_b32 s41, s38, 10")
        A("s_add_u32 s40, s40, s41")
        A(f"s_add_u32 s40, s40, {OOFF}")
        A("v_and_b32 v14, 1, v22")
        A("v_lshlrev_b32 v14, 14, v14")
        A("v_lshl_add_u32 v14, v25, 9, v14")
        A("v_lshl_add_u32 v14, v27, 4, v14")
        A("v_add_u32 v14, s40, v14")
        for i in range(4): A(f"v_mov_b32 v{120+i}, -1")
        vm.issue("clr", "global_store_dwordx4 v28, v[120:123], s[18:19] sc1")
        vm.issue("clr", "global_store_dwordx4 v14, v[120:123], s[18:19] sc1")
        vm.issue("clr", "global_store_dwordx4 v14, v[120:123], s[18:19] offset:256 sc1")
    for i in range(8):
        A(f"s_add_u32 s40, s39, {i}")
        A("s_and_b32 s40, s40, 7")
        A("s_lshl_b32 s41, s40, 7")
        A("s_mul_i32 s42, s40, %d" % (64*3072))
        for j in range(4):
            vm.issue(f"x{i}", f"buffer_load_dwordx4 v[{X+16*i+4*j}:{X+16*i+4*j+3}], v2, s[20:23], s41 offen")
            if j < 3: A("s_add_u32 s41, s41, 8192")
        A(f"s_add_u32 m0, s45, {slot(i)}")
        vm.issue(f"w{i}", "buffer_load_dwordx4 v3, s[24:27], s42 offen lds")
        A(f"s_add_u32 m0, s45, {slot(i)+1024}")
        A("s_add_u32 s42, s42, %d" % (8*3072))
        vm.issue(f"w{i}", "buffer_load_dwordx4 v3, s[24:27], s42 offen lds")
        if i == CL: clears()
    A("s_lshr_b32 s40, s38, 1")
    A("s_lshl_b32 s40, s40, 7")
    A("v_and_b32 v28, 1, v22")
    A("v_xor_b32 v28, v28, v21")
    A("v_lshlrev_b32 v15, 10, v20")
    A("v_lshl_add_u32 v15, v28, 4, v15")
    A("v_add_u32 v15, s40, v15")
    A("v_xor_b32 v16, 64, v15")
    WOH = 104
    A("s_lshl_b32 s41, s36, 15")
    for j in range(4):
        vm.issue("woh", f"buffer_load_dwordx4 v[{WOH+4*j}:{WOH+4*j+3}], v{15+(j&1)}, s[28:31], s41 offen")
        if j < 3: A("s_add_u32 s41, s41, 8192")
    stamp()
    A("v_xor_b32 v28, v21, v22")
    A("v_lshlrev_b32 v4, 7, v20")
    A("v_lshl_add_u32 v4, v28, 4, v4")
    A("v_add_u32 v4, s44, v4")
    A("v_xor_b32 v5, 64, v4")
    A("v_bfe_u32 v28, v26, 1, 3")
    A("v_xor_b32 v28, v28, v25")
    A("v_lshlrev_b32 v6, 7, v26")
    A("v_lshl_add_u32 v6, v28, 4, v6")
    A("v_add_u32 v6, s44, v6")
    for t in range(1, 4): A(f"v_xor_b32 v{6+t}, {32*t}, v6")
    A("v_and_b32 v28, 1, v23")
    A("v_lshlrev_b32 v30, 5, v28")
    A("v_and_b32 v28, 1, v22")
    A("v_lshl_add_u32 v30, v28, 4, v30")
    A("v_lshrrev_b32 v28, 1, v23")
    A("v_lshl_add_u32 v30, v28, 3, v30")
    A("v_lshl_add_u32 v31, v25, 3, v24")
    A("v_lshl_add_u32 v10, v31, 7, v30")
    A("v_lshrrev_b32 v28, 1, v24")
    A("v_lshl_add_u32 v10, v28, 6, v10")
    A("v_xor_b32 v11, 64, v10")
    A("v_lshl_add_u32 v12, v31, 6, v30")
    A("s_mul_i32 s40, s36, %d" % (16*3072))
    A("s_lshl_b32 s41, s38, 6")
    A("s_add_u32 s40, s40, s41")
    A("v_lshrrev_b32 v28, 2, v1")
    A("v_mul_u32_u24 v13, 3072, v28")
    A("v_lshl_add_u32 v13, v23, 4, v13")
    A("v_add_u32 v13, s40, v13")
    A("v_and_b32 v28, 1, v23")
    A("v_lshlrev_b32 v29, 9, v28")
    A("v_lshl_add_u32 v29, v24, 5, v29")
    A("v_and_b32 v28, 1, v22")
    A("v_lshl_add_u32 v29, v28, 4, v29")
    A("v_lshrrev_b32 v28, 1, v23")
    A("v_lshl_add_u32 v29, v28, 3, v29")
    A("v_add_u32 v29, s44, v29")
    A("v_bfe_u32 v28, v1, 2, 1")
    A("v_cmp_eq_u32_e64 s[46:47], v28, v25")
    A("s_mul_i32 s40, s36, %d" % (32*PVS))
    A(f"s_add_u32 s40, s40, {PVB}")
    A(f"v_mul_u32_u24 v18, {PVS}, v26")
    A("v_add_u32 v18, s40, v18")
    A("v_lshl_add_u32 v17, v25, 6, v18")
    A("v_lshl_add_u32 v18, v25, 5, v18")
    A("v_add_u32 v18, 128, v18")
    A(f"s_mov_b32 s48, 0x{LOG2E:08x}")
    WP = 96
    vm.wait("wphi")
    for t in range(2):
        for sec in range(2):
            A(f"ds_read_b64_tr_b16 v[{WP+4*t+2*sec}:{WP+4*t+2*sec+1}], v29 offset:{256*t+128*sec}")
    AK, AV, WB = 32, 48, 64
    for i in range(8):
        vm.wait(f"x{i}")
        if i == 0: stamp()
        for j in range(4):
            A(f"ds_write_b128 v{4+(j&1)}, v[{X+16*i+4*j}:{X+16*i+4*j+3}] offset:{1024*j}")
        for t in range(4):
            A(f"ds_read_b128 v[{X+16*i+4*t}:{X+16*i+4*t+3}], v{6+t}")
        if i == 0:
            A("s_waitcnt lgkmcnt(8)")
            for q in range(8):
                A(f"v_cndmask_b32_e64 v{WP+q}, 0, v{WP+q}, s[46:47]")
        if i == 4:
            A("v_add_u32 v10, 0x8000, v10")
            A("v_add_u32 v11, 0x8000, v11")
        vm.wait(f"w{i}", " lgkmcnt(0)" if i == 7 else "")
        A("s_barrier")
        if i == 7: stamp()
        so = slot(i) - (32768 if i >= 4 else 0)
        order = [(t, kv) for t in range(4) for kv in range(2)]
        if i == 7: order = [(t, 0) for t in range(4)] + [(t, 1) for t in range(4)]
        for (t, kv) in order:
            for sec in range(2):
                b = WB + 8*t + 4*kv + 2*sec
                A(f"ds_read_b64_tr_b16 v[{b}:{b+1}], v{10+kv} offset:{so+2048*t+512*sec}")
        if i == CL + 2:
            A("s_cmp_eq_u32 s36, 0")
            A("v_mov_b32 v28, s2")
            A("v_mov_b32 v29, 1")
            A("s_cselect_b64 exec, 1, 0")
            vm.issue("fl", "global_store_byte v28, v29, s[16:17] sc1")
            A("s_mov_b64 exec, -1")
        if i == 4:
            for q in range(8):
                A(f"s_add_u32 s40, s39, {q}")
                A("s_and_b32 s40, s40, 7")
                A("s_mul_i32 s42, s40, %d" % (64*3072))
                A("s_lshl_b32 s41, s36, 10")
                A(f"s_add_u32 m0, s41, {4096*q}")
                vm.issue("wq", "buffer_load_dwordx4 v13, s[24:27], s42 offen lds")
        for idx, (t, kv) in enumerate(order):
            A(f"s_waitcnt lgkmcnt({14-2*idx})")
            acc = AK if kv == 0 else AV
            b = WB + 8*t + 4*kv
            cin = "0" if (i == 0 and t == 0) else f"v[{acc}:{acc+15}]"
            A(f"v_mfma_f32_32x32x16_bf16 v[{acc}:{acc+15}], v[{b}:{b+3}], v[{X+16*i+4*t}:{X+16*i+4*t+3}], {cin}")
            if i == 7 and idx == 5:
                for q in range(8):
                    A(f"v_cvt_pk_bf16_f32 v{120+q}, v{AK+2*q}, v{AK+2*q+1}")
    A(f"v_mfma_f32_32x32x16_bf16 v[{AK}:{AK+15}], v[{WP}:{WP+3}], v[120:123], 0")
    A(f"v_mfma_f32_32x32x16_bf16 v[{AK}:{AK+15}], v[{WP+4}:{WP+7}], v[124:127], v[{AK}:{AK+15}]")
    stamp()
    for q in range(8):
        A(f"v_cvt_pk_bf16_f32 v{WB+q}, v{AV+2*q}, v{AV+2*q+1}")
    A(f"ds_write_b128 v18, v[{WB}:{WB+3}]")
    A(f"ds_write_b128 v18, v[{WB+4}:{WB+7}] offset:16")
    A("v_lshl_add_u32 v28, v22, 2, v24")
    A(f"v_mul_u32_u24 v19, {PVS}, v28")
    A("v_lshl_add_u32 v19, v23, 3, v19")
    A("s_lshr_b32 s40, s36, 1")
    A("s_lshl_b32 s41, s40, 5")
    A(f"s_add_u32 s41, s41, {PVB+128}")
    A("v_add_u32 v20, s41, v19")
    A("s_lshl_b32 s41, s36, 5")
    A(f"s_add_u32 s41, s41, {PVB}")
    A("v_add_u32 v19, s41, v19")
    A("s_waitcnt lgkmcnt(0)")
    emit_softmax(A, AK, WB, AV, [120, 121, 122, 123, 124, 125], "s48")
    for q in range(4):
        A(f"ds_write_b128 v17, v[{AV+4*q}:{AV+4*q+3}] offset:{16*q}")
    A("s_and_b32 s41, s36, 1")
    A("s_lshl_b32 s41, s41, 1")
    A("s_lshl_b32 s42, s38, 2")
    A("s_add_u32 s41, s41, s42")
    A("s_mul_i32 s41, s41, 12288")
    A("s_lshl_b32 s42, s37, 8")
    A("s_add_u32 s41, s41, s42")
    A(f"s_add_u32 s41, s41, {KVOFF}")
    A("s_lshl_b32 s42, s40, 12")
    A("s_add_u32 s42, s42, s41")
    A("s_add_u32 s41, s41, 8192")
    A("v_mul_u32_u24 v21, 12288, v25")
    A("v_lshl_add_u32 v21, v27, 4, v21")
    A("v_and_b32 v28, 1, v22")
    A("v_lshl_add_u32 v21, v28, 3, v21")
    A("v_add_u32 v29, s41, v21")
    A("v_add_u32 v21, s42, v21")
    A("v_and_b32 v28, 1, v1")
    A("v_cmp_eq_u32_e64 s[50:51], s40, v28")
    for q in range(4): A(f"v_mov_b32 v{120+q}, 0x3f803f80")
    A("s_waitcnt lgkmcnt(0)")
    A("s_barrier")
    stamp()
    for u in range(4):
        for op, vr in ((0, 19), (1, 20)):
            for sec in range(2):
                b = WB + 8*u + 4*op + 2*sec
                A(f"ds_read_b64_tr_b16 v[{b}:{b+1}], v{vr} offset:{32*PVS*u+16*PVS*sec}")
    for u in range(4):
        b = WB + 8*u
        A(f"s_waitcnt lgkmcnt({14-4*u})")
        A(f"v_mfma_f32_16x16x32_bf16 v[{AK+4}:{AK+7}], v[{b}:{b+3}], v[120:123], {'0' if u == 0 else f'v[{AK+4}:{AK+7}]'}")
        A(f"s_waitcnt lgkmcnt({12-4*u})")
        A(f"v_mfma_f32_16x16x32_bf16 v[{AK}:{AK+3}], v[{b}:{b+3}], v[{b+4}:{b+7}], {'0' if u == 0 else f'v[{AK}:{AK+3}]'}")
    A(f"v_cvt_pk_bf16_f32 v{AV+2}, v{AK+4}, v{AK+5}")
    A(f"v_cvt_pk_bf16_f32 v{AV+3}, v{AK+6}, v{AK+7}")
    A(f"v_cvt_pk_bf16_f32 v{AV}, v{AK}, v{AK+1}")
    A(f"v_cvt_pk_bf16_f32 v{AV+1}, v{AK+2}, v{AK+3}")
    for q in (2, 3, 0, 1): A(f"v_min_u32 v{AV+q}, -2, v{AV+q}")
    vm.issue("pub", f"global_store_dwordx2 v21, v[{AV}:{AV+1}], s[18:19] sc1")
    A("s_mov_b64 exec, s[50:51]")
    vm.issue("pub", f"global_store_dwordx2 v29, v[{AV+2}:{AV+3}], s[18:19] sc1")
    A("s_mov_b64 exec, -1")
    stamp()
    A("v_lshlrev_b32 v28, 2, v1")
    vm.wait("wq")
    A("s_barrier")
    vm.issue("flag", "global_load_dword v29, v28, s[16:17] sc1")
    A("s_mul_i32 s40, s36, 12")
    A("s_add_u32 s40, s40, 16")
    A("s_lshl_b32 s41, s40, 13")
    A("s_lshl_b32 s40, s40, 10")
    A("s_add_u32 s40, s40, 16384")
    for q in range(12):
        A(f"s_add_u32 m0, s40, {1024*q}")
        vm.issue("wo", f"buffer_load_dwordx4 v{15+(q&1)}, s[28:31], s41 offen lds")
        if q < 11: A("s_add_u32 s41, s41, 8192")
    def qreads(i):
        L = []
        for t in range(4):
            for sec in range(2):
                b = WB + 16*(i & 1) + 4*t + 2*sec
                L.append(f"ds_read_b64_tr_b16 v[{b}:{b+1}], v12 offset:{4096*i+1024*t+256*sec}")
        return L
    for l in qreads(0): A(l)
    for i in range(8):
        nxt = qreads(i+1) if i < 7 else []
        for t in range(4):
            b = WB + 16*(i & 1) + 4*t
            if nxt:
                A(nxt[2*t]); A(nxt[2*t+1])
                A(f"s_waitcnt lgkmcnt({8})")
            else:
                A(f"s_waitcnt lgkmcnt({6-2*t})")
            cin = "0" if (i == 0 and t == 0) else f"v[{AK}:{AK+15}]"
            A(f"v_mfma_f32_32x32x16_bf16 v[{AK}:{AK+15}], v[{b}:{b+3}], v[{X+16*i+4*t}:{X+16*i+4*t+3}], {cin}")
    A("s_barrier")
    stamp()
    A("s_lshl_b32 s40, s36, 12")
    A("v_lshl_add_u32 v30, v1, 4, s40")
    for j in range(4):
        A(f"ds_write_b128 v30, v[{WOH+4*j}:{WOH+4*j+3}] offset:{1024*j}")
    A("s_mov_b32 s77, 0x10000")
    A("s_mov_b32 s49, 0x01010101")
    vm.wait("flag")
    lf = a.newlabel("Aflag"); lfd = a.newlabel("Aflagdone")
    a.label(lf)
    A("v_cmp_ne_u32 vcc, s49, v29")
    A(f"s_cbranch_vccz {lfd}")
    A("s_sub_u32 s77, s77, 1")
    A(f"s_cbranch_scc1 {lfd}")
    A("global_load_dword v29, v28, s[16:17] sc1")
    A("s_waitcnt vmcnt(0)")
    A(f"s_branch {lf}")
    a.label(lfd)
    A("s_lshl_b32 s40, s38, 2")
    A("s_add_u32 s40, s40, s36")
    A("s_mul_i32 s40, s40, 12288")
    A(f"s_add_u32 s40, s40, {KVOFF}")
    A("v_lshl_add_u32 v21, v1, 4, s40")
    A("v_add_u32 v22, 0x1000, v21")
    A("v_add_u32 v23, 0x2000, v21")
    PL = 144
    def h1load(i):
        ig, pg = i // 4, i % 4
        return f"global_load_dwordx4 v[{PL+4*i}:{PL+4*i+3}], v{21+ig}, s[18:19] offset:{1024*pg} sc1"
    for i in range(12): A(h1load(i))
    for q in range(8):
        A(f"v_cvt_pk_bf16_f32 v{120+q}, v{AK+2*q}, v{AK+2*q+1}")
    A(f"v_mfma_f32_32x32x16_bf16 v[{AV}:{AV+15}], v[{WP}:{WP+3}], v[120:123], 0")
    A(f"v_mfma_f32_32x32x16_bf16 v[{AV}:{AV+15}], v[{WP+4}:{WP+7}], v[124:127], v[{AV}:{AV+15}]")
    A("v_and_b32 v28, 1, v1")
    A("v_lshlrev_b32 v28, 4, v28")
    A("v_mov_b32 v29, 0x3f80")
    A("v_lshlrev_b32 v29, v28, v29")
    A("v_lshrrev_b32 v28, 1, v27")
    A("s_waitcnt lgkmcnt(0)")
    for q in range(4):
        A(f"v_cmp_eq_u32 vcc, {q}, v28")
        A(f"v_cndmask_b32 v{116+q}, 0, v29, vcc")
    A("v_lshrrev_b32 v28, 4, v1")
    A("v_mul_u32_u24 v17, 48, v25")
    A("v_add_u32 v17, v17, v27")
    A(f"v_mul_u32_u24 v17, {KVS}, v17")
    A("v_and_b32 v28, 1, v28")
    A("v_lshl_add_u32 v17, v28, 3, v17")
    A("s_lshl_b32 s40, s36, 4")
    A(f"s_add_u32 s40, s40, {KVI}")
    A("v_add_u32 v17, s40, v17")
    A("v_lshrrev_b32 v28, 3, v26")
    A("v_and_b32 v29, 3, v1")
    A("v_lshl_add_u32 v28, v28, 2, v29")
    A("v_lshl_add_u32 v28, v25, 4, v28")
    A("v_add_u32 v29, 48, v27")
    A("v_cndmask_b32_e64 v18, v29, v28, s[46:47]")
    A("v_add_u32 v28, 32, v25")
    A("v_cndmask_b32_e64 v19, v29, v28, s[46:47]")
    A(f"v_mul_u32_u24 v18, {KVS}, v18")
    A(f"v_mul_u32_u24 v19, {KVS}, v19")
    A(f"v_add_u32 v18, {KVI}, v18")
    A(f"v_add_u32 v19, {KVI}, v19")
    PQ = 128
    emit_softmax(A, AV, WB, PQ, [120, 121, 122, 123, 124, 125], "s48")
    stamp()
    A("s_mov_b32 s77, 0x10000")
    lp = a.newlabel("Ah1"); lpd = a.newlabel("Ah1done")
    a.label(lp)
    A("s_waitcnt vmcnt(0)")
    for i in range(12):
        b = PL + 4*i
        t = 120 + (i & 3)
        A(f"v_max3_u32 v{t}, v{b}, v{b+1}, v{b+2}")
        A(f"v_max_u32 v{t}, v{t}, v{b+3}")
        A(f"v_cmp_eq_u32_e64 s[{52+2*i}:{53+2*i}], -1, v{t}")
    A("s_or_b64 s[40:41], s[52:53], s[54:55]")
    for i in range(2, 12): A(f"s_or_b64 s[40:41], s[40:41], s[{52+2*i}:{53+2*i}]")
    A(f"s_cbranch_scc0 {lpd}")
    A("s_sub_u32 s77, s77, 1")
    A(f"s_cbranch_scc1 {lpd}")
    for i in range(12):
        A(f"s_mov_b64 exec, s[{52+2*i}:{53+2*i}]")
        A(h1load(i))
    A("s_mov_b64 exec, -1")
    A(f"s_branch {lp}")
    a.label(lpd)
    stamp()
    for pg in range(4):
        for ig in range(3):
            b = PL + 4*(4*ig+pg)
            d = AK + 4*ig
            A(f"v_mfma_f32_16x16x32_bf16 v[{d}:{d+3}], v[116:119], v[{b}:{b+3}], {'0' if pg == 0 else f'v[{d}:{d+3}]'}")
    for ig in range(3):
        d = AK + 4*ig
        A(f"v_cvt_pk_bf16_f32 v{120+2*ig}, v{d}, v{d+1}")
        A(f"v_cvt_pk_bf16_f32 v{121+2*ig}, v{d+2}, v{d+3}")
        A(f"ds_write_b64 v17, v[{120+2*ig}:{121+2*ig}] offset:{16*KVS*ig}")
    A("s_waitcnt lgkmcnt(0)")
    A("s_barrier")
    for t in range(4):
        A(f"ds_read_b128 v[{WB+8*t}:{WB+8*t+3}], v19 offset:{16*t}")
        A(f"ds_read_b128 v[{WB+8*t+4}:{WB+8*t+7}], v18 offset:{16*t}")
    for t in range(4):
        A(f"s_waitcnt lgkmcnt({7-2*t})")
        A(f"v_mfma_f32_32x32x16_bf16 v[{AV}:{AV+15}], v[{WB+8*t}:{WB+8*t+3}], v[{PQ+4*t}:{PQ+4*t+3}], {'0' if t == 0 else f'v[{AV}:{AV+15}]'}")
        A(f"s_waitcnt lgkmcnt({6-2*t})")
        A(f"v_mfma_f32_32x32x16_bf16 v[{AK}:{AK+15}], v[{WB+8*t+4}:{WB+8*t+7}], v[{PQ+4*t}:{PQ+4*t+3}], {'0' if t == 0 else f'v[{AK}:{AK+15}]'}")
    A("s_lshl_b32 s40, s37, 3")
    A("s_and_b32 s41, s38, 1")
    A("s_lshl_b32 s41, s41, 2")
    A("s_add_u32 s40, s40, s41")
    A("s_add_u32 s40, s40, s36")
    A("s_lshl_b32 s41, s40, 14")
    A(f"s_add_u32 s41, s41, {OOFF}")
    A("v_lshl_add_u32 v21, v1, 4, s41")
    for q in range(1, 4): A(f"v_add_u32 v{21+q}, {0x1000*q}, v21")
    A("s_lshl_b32 s41, s40, 15")
    A("s_lshr_b32 s42, s38, 1")
    A("s_lshl_b32 s42, s42, 7")
    A("s_add_u32 s41, s41, s42")
    A("v_lshrrev_b32 v28, 4, v1")
    A("v_lshlrev_b32 v20, 11, v27")
    A("v_lshl_add_u32 v20, v28, 4, v20")
    A("v_add_u32 v20, s41, v20")
    A("v_bfe_u32 v29, v1, 2, 2")
    A("v_lshl_add_u32 v2, v28, 3, v29")
    A("v_lshlrev_b32 v2, 7, v2")
    A("v_lshrrev_b32 v29, 1, v29")
    A("v_and_b32 v30, 3, v1")
    A("v_xor_b32 v29, v29, v30")
    A("v_lshl_add_u32 v2, v29, 4, v2")
    A("v_and_b32 v29, 1, v28")
    A("v_lshl_add_u32 v2, v29, 6, v2")
    A("v_cmp_eq_u32_e64 s[50:51], 1, v29")
    A("v_and_b32 v29, 1, v30")
    A("v_lshl_add_u32 v2, v29, 3, v2")
    A("v_xor_b32 v3, 8, v2")
    A("v_xor_b32 v4, 64, v2")
    A("v_xor_b32 v5, 0x48, v2")
    for q in range(4): A(f"v_add_u32 v{6+q}, 0x8000, v{2+q}")
    A(f"v_add_f32 v120, 0x{f32bits(1e-6):08x}, v{AV}")
    A("v_rcp_f32 v120, v120")
    for q in range(8):
        A(f"v_mul_f32 v{AK+2*q}, v{AK+2*q}, v120")
        A(f"v_mul_f32 v{AK+2*q+1}, v{AK+2*q+1}, v120")
        A(f"v_cvt_pk_bf16_f32 v{AV+8+q}, v{AK+2*q}, v{AK+2*q+1}")
        A(f"v_min_u32 v{AV+8+q}, -2, v{AV+8+q}")
        if q == 3: A(f"global_store_dwordx4 v14, v[{AV+8}:{AV+11}], s[18:19] sc1")
    A(f"global_store_dwordx4 v14, v[{AV+12}:{AV+15}], s[18:19] offset:256 sc1")
    stamp()
    OF = 192
    def h2load(k):
        return f"global_load_dwordx4 v[{OF+4*k}:{OF+4*k+3}], v{21+(k>>2)}, s[18:19] offset:{1024*(k&3)} sc1"
    def woreads(k):
        L = []
        off = 4096*k + (16384 if k >= 4 else 0)
        hi = off >= 32768
        if hi: off -= 32768
        for t in range(4):
            for sec in range(2):
                b = WB + 16*(k & 1) + 4*t + 2*sec
                L.append(f"ds_read_b64_tr_b16 v[{b}:{b+1}], v{(6 if hi else 2)+t} offset:{off+512*sec}")
        return L
    ACC = 128
    for q in range(16): A(f"v_mov_b32 v{ACC+q}, 0")
    A("s_mov_b32 s76, 0")
    A("s_mov_b32 s77, 0x10000")
    MS = 44
    A("s_mov_b64 s[78:79], s[50:51]")
    for k in range(16): A(f"s_mov_b64 s[{MS+2*k}:{MS+2*k+1}], -1")
    l2 = a.newlabel("Ah2"); l2d = a.newlabel("Ah2done")
    a.label(l2)
    for k in range(16):
        A(f"s_mov_b64 exec, s[{MS+2*k}:{MS+2*k+1}]")
        A(h2load(k))
    A("s_mov_b64 exec, -1")
    for l in woreads(0): A(l)
    for k in range(16):
        ln = a.newlabel("Ah2n")
        if k < 15:
            for l in woreads(k+1): A(l)
        A(f"s_bitcmp1_b32 s76, {k}")
        A(f"s_cbranch_scc1 {ln}")
        b = OF + 4*k
        A(f"s_waitcnt vmcnt({15-k})")
        A(f"v_max3_u32 v120, v{b}, v{b+1}, v{b+2}")
        A(f"v_max_u32 v120, v120, v{b+3}")
        A(f"v_cmp_eq_u32_e64 s[{MS+2*k}:{MS+2*k+1}], -1, v120")
        A(f"s_cmp_lg_u64 s[{MS+2*k}:{MS+2*k+1}], 0")
        A(f"s_cbranch_scc1 {ln}")
        A(f"s_bitset1_b32 s76, {k}")
        A(f"s_waitcnt lgkmcnt({8 if k < 15 else 0})")
        for t in range(4):
            wb = WB + 16*(k & 1) + 4*t
            A(f"v_mfma_f32_16x16x32_bf16 v[{ACC+4*t}:{ACC+4*t+3}], v[{wb}:{wb+3}], v[{b}:{b+3}], v[{ACC+4*t}:{ACC+4*t+3}]")
        a.label(ln)
        A("s_nop 1")
    A("s_waitcnt lgkmcnt(0)")
    A("s_cmp_eq_u32 s76, 0xffff")
    A(f"s_cbranch_scc1 {l2d}")
    A("s_sub_u32 s77, s77, 1")
    A(f"s_cbranch_scc0 {l2}")
    a.label(l2d)
    stamp()
    A("s_nop 7")
    for u in range(2):
        e, o = ACC + 8*u, ACC + 8*u + 4
        A(f"v_cvt_pk_bf16_f32 v120, v{e}, v{e+1}")
        A(f"v_cvt_pk_bf16_f32 v121, v{e+2}, v{e+3}")
        A(f"v_cvt_pk_bf16_f32 v122, v{o}, v{o+1}")
        A(f"v_cvt_pk_bf16_f32 v123, v{o+2}, v{o+3}")
        d = WB + 4*u
        A(f"v_cndmask_b32_e64 v{d}, v120, v122, s[78:79]")
        A(f"v_cndmask_b32_e64 v{d+1}, v121, v123, s[78:79]")
        A(f"v_cndmask_b32_e64 v{d+2}, v122, v120, s[78:79]")
        A(f"v_cndmask_b32_e64 v{d+3}, v123, v121, s[78:79]")
        A(f"global_store_dwordx4 v20, v[{d}:{d+3}], s[12:13] offset:{64*u}")
    if stamps:
        A("s_waitcnt vmcnt(0)")
        stamp()
        n = nst[0]
        A("s_waitcnt lgkmcnt(0)")
        A("s_lshl_b32 s38, s2, 2")
        A("s_add_u32 s38, s38, s36")
        A("s_lshl_b32 s38, s38, 7")
        A(f"s_add_u32 s38, s38, {stamps}")
        A("v_mov_b32 v2, s38")
        for i in range(n):
            A(f"v_mov_b32 v4, s{streg(i)}")
            A(f"v_mov_b32 v5, s{streg(i)+1}")
            A(f"global_store_dwordx2 v2, v[4:5], s[18:19] offset:{8*i}")
        A("v_mov_b32 v4, s77")
        A(f"global_store_dword v2, v4, s[18:19] offset:{8*n}")
        A("s_waitcnt vmcnt(0)")
    A("s_endpgm")

if __name__ == "__main__":
    import sys
    a = Asm()
    a("s_cmp_ge_u32 s2, 256")
    a("s_cbranch_scc1 .Lexit")
    emit_A(a, stamps=(0x400000 if "--st" in sys.argv else None))
    a.label(".Lexit")
    a("s_endpgm")
    k = kernel_text(NAME + "_kernel", a.text(), vgpr=256, sgpr=102)
    open("tA.s", "w").write(file_text([(None, 256, 256, 81920)], [k]))
```

```python
import struct, math
from asmlib import *

def f32bits(x): return struct.unpack("<I", struct.pack("<f", x))[0]
def f32(x): return struct.unpack("<f", struct.pack("<f", x))[0]
LOG2E = math.log2(math.e)
L_HI = f32bits(LOG2E)
L_LO = f32bits(LOG2E - f32(LOG2E))
LN2 = f32bits(math.log(2.0))

WSZ = 20480
UOFF = 0
KOFF = 4096
ROWS = 288
LIN = 8192
CMP = 0

def emit_B(a, dbgK=False, stamps=None):
    A = a
    nst = [0]
    def stamp():
        if stamps:
            i = nst[0]; nst[0] += 1
            A(f"s_memtime s[{64+2*i}:{65+2*i}]")
            A("s_waitcnt lgkmcnt(0)")
    stamp()
    A("s_load_dwordx16 s[4:19], s[0:1], 32")
    A("s_load_dwordx4 s[20:23], s[0:1], 96")
    if dbgK or stamps:
        A("s_load_dwordx2 s[40:41], s[0:1], 120")
    A("v_and_b32 v1, 63, v0")
    A("v_lshrrev_b32 v2, 6, v0")
    A("s_and_b32 s25, s2, 7")
    A("s_lshr_b32 s26, s2, 3")
    A("v_readfirstlane_b32 s24, v2")
    A("s_lshl_b32 s25, s25, 6")
    A("s_lshl_b32 s26, s26, 2")
    A("s_add_u32 s25, s25, s26")
    A("s_add_u32 s26, s25, s24")
    A("s_mul_i32 s27, s24, %d" % WSZ)
    A("s_lshl_b32 s28, s26, 8")
    A("v_lshlrev_b32 v24, 2, v1")
    A("v_add_u32 v25, s28, v24")
    A("s_lshl_b32 s29, s26, 1")
    A("v_mov_b32 v26, s29")
    A("s_lshl_b32 s30, s25, 1")
    A("v_lshlrev_b32 v27, 13, v0")
    A("v_add_u32 v27, s30, v27")
    A("v_add_u32 v28, 0x1000, v27")
    A("s_mov_b32 s32, 0x05040100")
    A("s_mov_b32 s33, 0x07060302")
    A("s_mov_b32 s34, 0x01000100")
    A("s_mov_b32 s35, 0x03020302")
    A("s_waitcnt lgkmcnt(0)")
    A("global_load_ushort v30, v26, s[18:19]")
    A("global_load_ushort v31, v26, s[20:21]")
    for i in range(6):
        A(f"global_load_dword v{2+i}, v25, s[{6+2*i}:{7+2*i}]")
    for i in range(8):
        A(f"global_load_dwordx2 v[{8+2*i}:{9+2*i}], v{27+(i>>2)}, s[4:5] offset:{(i&3)*1024}")
    A("s_add_u32 s31, s27, %d" % KOFF)
    A("v_add_u32 v32, s31, v24")
    A("v_and_b32 v35, 15, v1")
    A("v_lshrrev_b32 v36, 4, v1")
    A("v_mul_u32_u24 v33, %d, v35" % ROWS)
    A("v_lshl_add_u32 v33, v36, 4, v33")
    A("v_add_u32 v33, s31, v33")
    A("v_min_u32 v34, 8, v35")
    A("v_mul_u32_u24 v34, %d, v34" % ROWS)
    A("v_lshl_add_u32 v34, v36, 4, v34")
    A("v_add_u32 v34, s31, v34")
    A("v_add_u32 v34, %d, v34" % (48*ROWS))
    D = 40
    for i in range(12):
        A(f"v_mov_b32 v{D+i}, 0")
    A("v_mov_b32 v37, 0x3f80")
    A("s_waitcnt vmcnt(14)")
    A("v_lshlrev_b32 v30, 16, v30")
    A("s_mov_b32 s36, 0x%08x" % L_HI)
    A("v_mul_f32 v38, s36, v30")
    A("v_fma_f32 v39, v30, s36, -v38")
    A("v_fmac_f32 v39, 0x%08x, v30" % L_LO)
    A("v_exp_f32 v38, v38")
    A("v_mul_f32 v39, 0x%08x, v39" % LN2)
    A("v_fmac_f32 v38, v38, v39")
    A("v_cvt_pk_bf16_f32 v38, v38, v38")
    A("v_lshlrev_b32 v30, 16, v38")
    A("v_lshlrev_b32 v31, 16, v31")
    A("v_cmp_eq_u32 vcc, 0, v1")
    A("v_cndmask_b32 v31, 0, v31, vcc")
    A("s_mov_b32 s37, 0")
    A("s_waitcnt vmcnt(8)")
    stamp()
    loop = a.newlabel("Bpass")
    a.label(loop)
    T0 = 52
    are, aim, bre, bim, cre, cim = range(T0, T0+6)
    for i in range(6):
        A(f"v_lshlrev_b32 v{T0+i}, 16, v{2+i}")
    for i in range(6):
        A(f"v_lshrrev_b32 v{2+i}, 16, v{2+i}")
    a2, phi = 58, 59
    A(f"v_mul_f32 v{a2}, v30, v{are}")
    A(f"v_mul_f32 v{phi}, v30, v{aim}")
    A(f"v_mul_f32 v{bre}, v30, v{bre}")
    A(f"v_mul_f32 v{bim}, v30, v{bim}")
    A(f"v_mul_f32 v{a2}, s36, v{a2}")
    A(f"v_mul_f32 v{phi}, 0.15915494, v{phi}")
    F = (60, 61)
    A(f"v_mul_f32_e64 v{F[0]}, v{cim}, -v{bim}")
    A(f"v_mul_f32_e64 v{F[1]}, v{cim}, -v{bre}")
    A(f"v_fmac_f32 v{F[0]}, v{cre}, v{bre}")
    A(f"v_fma_f32 v{F[1]}, -v{cre}, v{bim}, v{F[1]}")
    Z1, Z8, Z128 = (62, 63), (64, 65), (66, 67)
    tmp = [68, 69, 70, 71, 72, 73, 74, 75, 76]
    def anchor(z, g, t):
        e, p, s = t
        if g == 1:
            A(f"v_exp_f32 v{e}, v{a2}")
            A(f"v_fract_f32 v{p}, v{phi}")
        else:
            A(f"v_mul_f32 v{e}, 0x{f32bits(float(g)):08x}, v{a2}")
            A(f"v_mul_f32 v{p}, 0x{f32bits(float(g)):08x}, v{phi}")
            A(f"v_exp_f32 v{e}, v{e}")
            A(f"v_fract_f32 v{p}, v{p}")
        A(f"v_sin_f32 v{s}, v{p}")
        A(f"v_cos_f32 v{p}, v{p}")
    anchor(Z1, 1, tmp[0:3]); anchor(Z8, 8, tmp[3:6]); anchor(Z128, 128, tmp[6:9])
    for z, t, conj in ((Z1, tmp[0:3], 0), (Z8, tmp[3:6], 1), (Z128, tmp[6:9], 0)):
        e, p, s = t
        A(f"v_mul_f32 v{z[0]}, v{e}, v{p}")
        if conj:
            A(f"v_mul_f32_e64 v{z[1]}, v{e}, -v{s}")
        else:
            A(f"v_mul_f32 v{z[1]}, v{e}, v{s}")
    pk = [78, 79, 80, 81]
    pkc = [0]
    def put(row, z):
        r = pk[pkc[0] % 4]; pkc[0] += 1
        A(f"v_cvt_pk_bf16_f32 v{r}, v{z[0]}, v{z[1]}")
        A(f"ds_write_b32 v32, v{r} offset:{row*ROWS}")
    def cmul(d, x, y):
        A(f"v_mul_f32_e64 v{d[0]}, v{x[1]}, -v{y[1]}")
        A(f"v_mul_f32 v{d[1]}, v{x[1]}, v{y[0]}")
        A(f"v_fmac_f32 v{d[0]}, v{x[0]}, v{y[0]}")
        A(f"v_fmac_f32 v{d[1]}, v{x[0]}, v{y[1]}")
    Fb = [F, (82, 83)]
    put(0, F)
    for c in range(1, 16):
        cmul(Fb[c & 1], Fb[(c-1) & 1], Z8)
        put(c, Fb[c & 1])
    R = [None, Z1] + [(84+2*i, 85+2*i) for i in range(6)]
    A(f"ds_write_b32 v32, v37 offset:{16*ROWS}")
    put(17, Z1)
    for r in range(2, 8):
        cmul(R[r], R[r-1], Z1)
        put(16+r, R[r])
    Qb = [(96, 97), (98, 99)]
    P = [(100, 101), (102, 103)]
    pc = 0
    Q = Z128
    for q in range(1, 17):
        if q > 1:
            Qn = Qb[q & 1]
            cmul(Qn, Q, Z128)
            Q = Qn
        if q == 1:
            put(24, Q)
            for r in range(1, 8):
                cmul(P[pc & 1], R[r], Q); put(24+r, P[pc & 1]); pc += 1
        elif q in (2, 3):
            base = 32 + 4*(q-2)
            put(base, Q)
            for r in range(1, 4):
                cmul(P[pc & 1], R[2*r], Q); put(base+r, P[pc & 1]); pc += 1
        elif q < 8:
            base = 40 + 2*(q-4)
            put(base, Q)
            cmul(P[pc & 1], R[4], Q); put(base+1, P[pc & 1]); pc += 1
        else:
            put(48 + q - 8, Q)
    A("s_waitcnt lgkmcnt(0)")
    OP = 104
    for k in range(4):
        b = OP + 16*k
        A(f"ds_read_b128 v[{b}:{b+3}], v33 offset:{64*k}")
        A(f"ds_read_b128 v[{b+4}:{b+7}], v33 offset:{64*k+16*ROWS}")
        A(f"ds_read_b128 v[{b+8}:{b+11}], v33 offset:{64*k+32*ROWS}")
        A(f"ds_read_b128 v[{b+12}:{b+15}], v34 offset:{64*k}")
    for k in range(4):
        b = OP + 16*k
        A(f"s_waitcnt lgkmcnt({12-4*k})")
        for t in range(3):
            A(f"v_mfma_f32_16x16x32_bf16 v[{D+4*t}:{D+4*t+3}], v[{b+4+4*t}:{b+7+4*t}], v[{b}:{b+3}], v[{D+4*t}:{D+4*t+3}]")
    A("s_add_u32 s37, s37, 1")
    A("s_cmp_lt_u32 s37, 2")
    A(f"s_cbranch_scc1 {loop}")
    stamp()
    A("s_waitcnt vmcnt(0)")
    stamp()
    A("v_lshlrev_b32 v52, 4, v0")
    for ch in range(4):
        sel = "s32" if (ch & 1) == 0 else "s33"
        b = 56 + 4*ch
        for j in range(4):
            A(f"v_perm_b32 v{b+j}, v{8+2*(2*j+1)+(ch>>1)}, v{8+2*(2*j)+(ch>>1)}, {sel}")
        A(f"ds_write_b128 v52, v[{b}:{b+3}] offset:{ch*WSZ+UOFF}")
    A(f"v_add_f32 v{D}, v{D}, v31")
    for t in range(3):
        A(f"v_cvt_pk_bf16_f32 v{72+2*t}, v{D+4*t}, v{D+4*t+1}")
        A(f"v_cvt_pk_bf16_f32 v{73+2*t}, v{D+4*t+2}, v{D+4*t+3}")
    A("v_lshrrev_b32 v53, 1, v36")
    A("v_lshlrev_b32 v53, 8, v53")
    A("v_lshl_add_u32 v53, v35, 4, v53")
    A("v_and_b32 v54, 1, v36")
    A("v_lshl_add_u32 v53, v54, 3, v53")
    A("v_add_u32 v53, s31, v53")
    A(f"ds_write_b64 v53, v[72:73] offset:{LIN}")
    A("v_cmp_gt_u32 vcc, 2, v36")
    A("v_lshlrev_b32 v54, 2, v35")
    A("v_lshlrev_b32 v55, 3, v35")
    A("v_cndmask_b32 v54, v54, v55, vcc")
    A("v_lshl_add_u32 v54, v36, 7, v54")
    A("v_add_u32 v54, s31, v54")
    A("v_cndmask_b32 v55, 64, 4, vcc")
    A("v_add_u32 v55, v54, v55")
    A(f"ds_write_b32 v54, v74 offset:{CMP}")
    A(f"ds_write_b32 v55, v75 offset:{CMP}")
    A("v_lshlrev_b32 v78, 1, v35")
    A("v_lshl_add_u32 v78, v36, 7, v78")
    A("v_add_u32 v78, s31, v78")
    A(f"ds_write_b16 v78, v76 offset:{CMP+512}")
    A(f"ds_write_b16_d16_hi v78, v76 offset:{CMP+512+32}")
    A(f"ds_write_b16 v78, v77 offset:{CMP+512+64}")
    A(f"ds_write_b16_d16_hi v78, v77 offset:{CMP+512+96}")
    A("v_mov_b32 v80, 0")
    A("v_mov_b32 v81, 0")
    A("v_mov_b32 v79, s31")
    A(f"ds_write_b64 v79, v[80:81] offset:{LIN-8}")
    A("v_lshl_add_u32 v82, v1, 3, s31")
    A("v_lshl_add_u32 v83, v1, 4, s31")
    A("v_lshl_add_u32 v79, v1, 5, s31")
    A("s_waitcnt lgkmcnt(0)")
    A(f"ds_read_b64 v[84:85], v82 offset:{CMP}")
    A(f"ds_read_u16 v86, v82 offset:{CMP+8}")
    A(f"ds_read_b32 v87, v32 offset:{CMP+256}")
    A(f"ds_read_u16 v88, v32 offset:{CMP+260}")
    A(f"ds_read_b32 v89, v32 offset:{CMP+512}")
    A(f"ds_read_u16 v90, v32 offset:{CMP+516}")
    A("s_waitcnt lgkmcnt(4)")
    A("v_perm_b32 v92, v84, v84, s34")
    A("v_alignbit_b32 v93, v85, v84, 16")
    A("v_perm_b32 v94, v85, v85, s34")
    A("v_alignbit_b32 v95, v86, v85, 16")
    A(f"ds_write_b128 v83, v[92:95] offset:{LIN+512}")
    A("s_waitcnt lgkmcnt(3)")
    A("v_perm_b32 v96, v87, v87, s34")
    A("v_mov_b32 v97, v87")
    A("v_perm_b32 v98, v87, v87, s35")
    A("v_perm_b32 v99, v88, v88, s34")
    A(f"ds_write_b128 v83, v[96:99] offset:{LIN+1024}")
    A("s_waitcnt lgkmcnt(2)")
    A("v_perm_b32 v100, v89, v89, s34")
    A("v_perm_b32 v101, v89, v89, s34")
    A("v_mov_b32 v102, v89")
    A("v_perm_b32 v103, v89, v89, s35")
    A("v_perm_b32 v104, v89, v89, s35")
    A("v_perm_b32 v105, v89, v89, s35")
    A("v_perm_b32 v106, v90, v90, s34")
    A("v_perm_b32 v107, v90, v90, s34")
    A(f"ds_write_b128 v79, v[100:103] offset:{LIN+2048}")
    A(f"ds_write_b128 v79, v[104:107] offset:{LIN+2048+16}")
    A("s_waitcnt lgkmcnt(0)")
    if dbgK:
        for j in range(4):
            A(f"ds_read_b128 v[{100+4*j}:{103+4*j}], v83 offset:{LIN+1024*j}")
        A("s_lshl_b32 s38, s26, 12")
        A("v_lshl_add_u32 v99, v1, 4, s38")
        A("s_waitcnt lgkmcnt(0)")
        for j in range(4):
            A(f"global_store_dwordx4 v99, v[{100+4*j}:{103+4*j}], s[40:41] offset:{1024*j}")
        A("s_waitcnt vmcnt(0)")
    O = 100
    for j in range(8):
        b = O + 10*j
        A(f"ds_read_b64 v[{b+8}:{b+9}], v82 offset:{LIN-8+512*j}")
        A(f"ds_read_b64 v[{b}:{b+1}], v82 offset:{LIN+512*j}")
    for j in range(8):
        b = O + 10*j
        A(f"s_waitcnt lgkmcnt({14-2*j})")
        A(f"v_alignbit_b32 v{b+2}, v{b}, v{b+9}, 16")
        A(f"v_alignbit_b32 v{b+3}, v{b+1}, v{b}, 16")
        A(f"v_mov_b32 v{b+4}, v{b+9}")
        A(f"v_mov_b32 v{b+5}, v{b}")
        A(f"v_alignbit_b32 v{b+6}, v{b+9}, v{b+8}, 16")
        A(f"v_alignbit_b32 v{b+7}, v{b}, v{b+9}, 16")
    for j in range(8):
        b = O + 10*j
        A(f"ds_write_b128 v79, v[{b}:{b+3}] offset:{2048*j}")
        A(f"ds_write_b128 v79, v[{b+4}:{b+7}] offset:{2048*j+16}")
    A("v_and_b32 v53, 3, v1")
    A("v_bfe_u32 v54, v1, 2, 2")
    A("v_lshlrev_b32 v52, 5, v53")
    A("v_lshl_add_u32 v52, v54, 3, v52")
    A("v_lshlrev_b32 v55, 6, v36")
    A("v_sub_u32 v52, v52, v55")
    A("v_add_u32 v52, s31, v52")
    A("v_add_u32 v52, 96, v52")
    A("v_lshlrev_b32 v56, 5, v35")
    A("v_lshl_add_u32 v56, v36, 4, v56")
    A("v_add_u32 v57, s27, v56")
    A(f"v_add_u32 v57, {UOFF+32}, v57")
    for tau in range(8):
        A(f"v_cmp_le_u32_e64 s[{44+2*tau}:{45+2*tau}], {('0x%x' % (64*tau+32)) if 64*tau+32 > 64 else 64*tau+32}, v56" if 64*tau+32 <= 64 else
          f"v_cmp_le_u32 vcc, 0x{64*tau+32:x}, v56\n s_mov_b64 s[{44+2*tau}:{45+2*tau}], vcc")
    A("v_lshlrev_b32 v58, 3, v36")
    A("v_sub_u32 v58, v35, v58")
    A("v_cmp_le_i32_e64 s[60:61], -16, v58")
    A("v_cmp_le_i32_e64 s[62:63], -12, v58")
    A("s_waitcnt lgkmcnt(0)")
    stamp()
    A("s_barrier")
    stamp()
    ACC = 64
    SET = [96, 160]
    def loads(tau):
        s = SET[tau & 1]
        L = []
        for x in range(8):
            ar = s + 4*x
            L.append(f"ds_read_b64_tr_b16 v[{ar}:{ar+1}], v52 offset:{2048*x+256*tau+32}")
            L.append(f"ds_read_b64_tr_b16 v[{ar+2}:{ar+3}], v52 offset:{2048*x+256*tau}")
            br = s + 32 + 4*x
            if x == 0:
                L.append("\n".join([f"v_mov_b32 v{br+i}, 0" for i in range(4)] +
                    [f"v_subrev_u32 v59, {64*tau+64 if 64*tau+64<=64 else hex(64*tau+64)}, v57",
                     f"s_mov_b64 exec, s[{44+2*tau}:{45+2*tau}]",
                     f"ds_read_b128 v[{br}:{br+3}], v59",
                     "s_mov_b64 exec, -1"]))
            else:
                L.append(f"ds_read_b128 v[{br}:{br+3}], v57 offset:{512*(x-1)+64*(7-tau)}")
        return L
    for l in loads(0): A(l)
    first = [True]*8
    for tau in range(8):
        s = SET[tau & 1]
        A("s_waitcnt lgkmcnt(0)")
        if tau == 0:
            A(f"v_cndmask_b32_e64 v{s}, 0, v{s}, s[60:61]")
            A(f"v_cndmask_b32_e64 v{s+1}, 0, v{s+1}, s[60:61]")
            A(f"v_cndmask_b32_e64 v{s+2}, 0, v{s+2}, s[62:63]")
            A(f"v_cndmask_b32_e64 v{s+3}, 0, v{s+3}, s[62:63]")
            A("s_nop 1")
        nxt = loads(tau+1) if tau < 7 else []
        pairs = [(x, c) for x in range(8) for c in range(8-x)]
        for idx, (x, c) in enumerate(pairs):
            i = x + c
            acc = f"v[{ACC+4*i}:{ACC+4*i+3}]"
            cin = "0" if first[i] else acc
            first[i] = False
            A(f"v_mfma_f32_16x16x32_bf16 {acc}, v[{s+4*x}:{s+4*x+3}], v[{s+32+4*c}:{s+32+4*c+3}], {cin}")
            if idx < len(nxt):
                A(nxt[idx])
    stamp()
    A("s_lshl_b32 s38, s24, 6")
    A("s_add_u32 s38, s38, s31")
    A("v_lshlrev_b32 v52, 5, v35")
    A("v_lshl_add_u32 v52, v36, 3, v52")
    A("v_add_u32 v52, s38, v52")
    A("v_mul_u32_u24 v53, %d, v54" % (WSZ+64))
    A("v_and_b32 v55, 3, v1")
    A("v_lshl_add_u32 v53, v55, 3, v53")
    A("v_lshl_add_u32 v53, v36, 5, v53")
    A("s_lshl_b32 s39, s24, 10")
    A("v_add_u32 v53, s39, v53")
    A("s_lshl_b32 s39, s24, 20")
    A("s_add_u32 s39, s39, s30")
    A("s_add_u32 s39, s39, 1024")
    A("v_lshlrev_b32 v55, 11, v1")
    A("v_add_u32 v55, s39, v55")
    A("s_nop 4")
    for i in range(8):
        b = ACC + 4*i
        A(f"v_cvt_pk_bf16_f32 v{96+2*i}, v{b}, v{b+1}")
        A(f"v_cvt_pk_bf16_f32 v{97+2*i}, v{b+2}, v{b+3}")
        A(f"ds_write_b64 v52, v[{96+2*i}:{97+2*i}] offset:{512*i}")
    A("s_waitcnt lgkmcnt(0)")
    A("s_barrier")
    for j in range(8):
        A(f"ds_read_b64_tr_b16 v[{112+2*j}:{113+2*j}], v53 offset:{KOFF+128*j}")
    for j in range(8):
        A(f"s_waitcnt lgkmcnt({7-j})")
        A(f"global_store_dwordx2 v55, v[{112+2*j}:{113+2*j}], s[22:23]")
        if j < 7:
            A("v_add_u32 v55, 0x20000, v55")
    if stamps:
        stamp()
        A("s_waitcnt vmcnt(0)")
        stamp()
        n = nst[0]
        A("s_lshl_b32 s38, s2, 2")
        A("s_add_u32 s38, s38, s24")
        A("s_lshl_b32 s38, s38, 7")
        A(f"s_add_u32 s38, s38, {stamps}")
        A("v_mov_b32 v2, s38")
        for i in range(n):
            A(f"v_mov_b32 v4, s{64+2*i}")
            A(f"v_mov_b32 v5, s{65+2*i}")
            A(f"global_store_dwordx2 v2, v[4:5], s[40:41] offset:{8*i}")
        A("s_waitcnt vmcnt(0)")
    A("s_endpgm")

if __name__ == "__main__":
    import sys
    dbg = "--dbg" in sys.argv
    a = Asm()
    a("s_cmp_ge_u32 s2, 128")
    a("s_cbranch_scc1 .Lexit")
    emit_B(a, dbgK=dbg, stamps=(0x400000 if "--st" in sys.argv else None))
    a.label(".Lexit")
    a("s_endpgm")
    k = kernel_text(NAME + "_kernel", a.text(), vgpr=256, sgpr=96)
    open("tB.s", "w").write(file_text([(None, 128, 256, 81920)], [k]))
```

```python
import sys
from asmlib import *
import genA, genB
def build(path, stamps=False, **kw):
    a = Asm()
    a("s_cmp_ge_u32 s2, 256")
    a("s_cbranch_scc1 .LB")
    genA.emit_A(a, stamps=(0x400000 if stamps else None), **kw.get("A", {}))
    a.label(".LB")
    a("s_cmp_ge_u32 s2, 384")
    a("s_cbranch_scc1 .Lexit")
    a("s_sub_u32 s2, s2, 256")
    genB.emit_B(a, stamps=(0x480000 if stamps else None), **kw.get("B", {}))
    a.label(".Lexit")
    a("s_endpgm")
    k = kernel_text(NAME + "_kernel", a.text(), vgpr=256, sgpr=102)
    hdr = "".join(l for l in open("cdna_kernels/" + NAME + ".s.ref") if l.startswith(";") and "@launch" not in l)
    open(path, "w").write(file_text([(None, 384, 256, 81920)], [k], header=hdr))
if __name__ == "__main__":
    build("cdna_kernels/" + NAME + ".s")
    build("tF.s", stamps=True)
```

```python
import struct, math
from asmlib import *

def f32bits(x): return struct.unpack("<I", struct.pack("<f", x))[0]
LOG2E = f32bits(math.log2(math.e))

KVOFF = 0x000000
OOFF = 0x100000
UTOFF = 0x300000
S0, S1, S2 = 32768, 49152, 65536
PVB = 0
PVS = 224
KVI = S2
KVS = 80
BC_OFF = 128
BU_OFF = 132

class VM:
    def __init__(self, A): self.A = A; self.ops = []
    def issue(self, tag, ins):
        self.A(ins); self.ops.append(tag)
    def cnt(self, tag):
        idx = max(i for i, t in enumerate(self.ops) if t == tag)
        n = len(self.ops) - 1 - idx
        assert n <= 63
        return n
    def wait(self, tag, extra=""):
        self.A(f"s_waitcnt vmcnt({self.cnt(tag)}){extra}")
    def drain(self):
        self.A("s_waitcnt vmcnt(0)"); self.ops = []

def softmax_stream(P, EN, OUT, T, sL, pk=False):
    mx, mn, t0, t1, s0, s1 = T
    H = []
    H.append(f"v_max3_f32 v{mx}, v{P}, v{P+1}, v{P+2}")
    H.append(f"v_min3_f32 v{mn}, v{P}, v{P+1}, v{P+2}")
    H.append(f"v_max3_f32 v{t0}, v{P+3}, v{P+4}, v{P+5}")
    H.append(f"v_min3_f32 v{t1}, v{P+3}, v{P+4}, v{P+5}")
    for i in (6, 10):
        H.append(f"v_max3_f32 v{mx}, v{mx}, v{P+i}, v{P+i+1}")
        H.append(f"v_min3_f32 v{mn}, v{mn}, v{P+i}, v{P+i+1}")
        H.append(f"v_max3_f32 v{t0}, v{t0}, v{P+i+2}, v{P+i+3}")
        H.append(f"v_min3_f32 v{t1}, v{t1}, v{P+i+2}, v{P+i+3}")
    H.append(f"v_max3_f32 v{mx}, v{mx}, v{P+14}, v{P+15}")
    H.append(f"v_min3_f32 v{mn}, v{mn}, v{P+14}, v{P+15}")
    H.append(f"v_max_f32 v{mx}, v{mx}, v{t0}")
    H.append(f"v_min_f32 v{mn}, v{mn}, v{t1}")
    H.append(f"v_mul_f32_e64 v{mx}, -v{mx}, {sL}")
    H.append(f"v_mul_f32 v{mn}, {sL}, v{mn}")
    B = []
    for i in range(16):
        B.append(f"v_fma_f32 v{EN+i}, -v{P+i}, {sL}, v{mn}")
        B.append(f"v_fma_f32 v{P+i}, v{P+i}, {sL}, v{mx}")
        if i >= 1:
            B.append(f"v_exp_f32 v{EN+i-1}, v{EN+i-1}")
            B.append(f"v_exp_f32 v{P+i-1}, v{P+i-1}")
        if i >= 3:
            j = i - 2
            if j == 1:
                B.append(f"v_add_f32 v{s0}, v{P}, v{P+1}")
                B.append(f"v_add_f32 v{s1}, v{EN}, v{EN+1}")
            else:
                B.append(f"v_add_f32 v{s0}, v{s0}, v{P+j}")
                B.append(f"v_add_f32 v{s1}, v{s1}, v{EN+j}")
    B.append(f"v_exp_f32 v{EN+15}, v{EN+15}")
    B.append(f"v_exp_f32 v{P+15}, v{P+15}")
    B.append(f"v_add_f32 v{s0}, v{s0}, v{P+14}")
    B.append(f"v_add_f32 v{s1}, v{s1}, v{EN+14}")
    B.append(f"v_add_f32 v{s1}, v{s1}, v{EN+15}")
    B.append(f"v_add_f32 v{s0}, v{s0}, v{P+15}")
    B.append(f"v_rcp_f32 v{s1}, v{s1}")
    B.append(f"v_rcp_f32 v{s0}, v{s0}")
    Tl = []
    for h, s, E in ((1, s1, EN), (0, s0, P)):
        for i in range(0, 16, 2):
            a, b = E+i, E+i+1
            Tl.append(f"v_mul_f32 v{a}, v{a}, v{s}")
            Tl.append(f"v_mul_f32 v{b}, v{b}, v{s}")
            Tl.append(f"v_cvt_pk_bf16_f32 v{OUT[8*h+i//2]}, v{a}, v{b}")
    return H, B, Tl

def cost(ins):
    return 8 if ins.startswith(("v_exp", "v_rcp")) else 4

def interleave(A, valu, items, budget):
    vi = 0
    for it in items:
        for l in it: A(l)
        c = 0
        while vi < len(valu) and c + cost(valu[vi]) <= budget:
            A(valu[vi]); c += cost(valu[vi]); vi += 1
    return valu[vi:]

def emit_A(a, stamps=None, prio=None, noflag=False, bud=16):
    A = a
    nst = [0]
    def stamp():
        if stamps:
            i = nst[0]; nst[0] += 1
            A(f"s_memtime s[{streg(i)}:{streg(i)+1}]")
    def streg(i): return 80+2*i if i < 10 else 20+2*(i-10)
    stamp()
    if prio is not None: A(f"s_setprio {prio}")
    A("s_load_dwordx8 s[4:11], s[0:1], 0")
    A("s_load_dwordx2 s[12:13], s[0:1], 104")
    A("s_load_dwordx4 s[16:19], s[0:1], 112")
    A("v_and_b32 v1, 63, v0")
    A("v_lshrrev_b32 v2, 6, v0")
    A("s_and_b32 s40, s2, 7")
    A("s_lshr_b32 s41, s2, 3")
    A("v_readfirstlane_b32 s36, v2")
    A("s_and_b32 s42, s41, 3")
    A("s_lshr_b32 s43, s41, 2")
    A("s_and_b32 s37, s40, 3")
    A("s_lshl_b32 s37, s37, 2")
    A("s_add_u32 s37, s37, s42")
    A("s_lshr_b32 s38, s40, 2")
    A("s_lshl_b32 s38, s38, 3")
    A("s_add_u32 s38, s38, s43")
    A("s_lshl_b32 s39, s42, 1")
    A("s_add_u32 s39, s39, s43")
    A("v_lshrrev_b32 v21, 3, v1")
    A("v_lshrrev_b32 v22, 4, v1")
    A("v_and_b32 v23, 3, v1")
    A("v_bfe_u32 v24, v1, 2, 2")
    A("v_lshrrev_b32 v25, 5, v1")
    A("v_and_b32 v26, 31, v1")
    A("v_and_b32 v27, 15, v1")
    A("s_lshl_b32 s40, s38, 10")
    A("v_lshl_add_u32 v29, v1, 4, s40")
    A("s_mul_i32 s40, s36, %d" % (16*3072))
    A("s_lshl_b32 s41, s38, 6")
    A("s_add_u32 s40, s40, s41")
    A("v_lshrrev_b32 v28, 2, v1")
    A("v_mul_u32_u24 v4, 3072, v28")
    A("v_lshl_add_u32 v4, v23, 4, v4")
    A("v_add_u32 v4, s40, v4")
    A("s_lshl_b32 s40, s37, 17")
    A("s_lshl_b32 s41, s36, 15")
    A("s_add_u32 s40, s40, s41")
    A("v_and_b32 v28, 7, v1")
    A("v_xor_b32 v28, v28, v22")
    A("v_lshlrev_b32 v2, 10, v21")
    A("v_lshl_add_u32 v2, v28, 4, v2")
    A("v_add_u32 v2, s40, v2")
    A("v_xor_b32 v3, 64, v2")
    A("s_lshl_b32 s44, s36, 12")
    A("s_lshl_b32 s45, s36, 10")
    for i in range(8):
        A(f"s_add_u32 s40, s39, {i}")
        A("s_and_b32 s40, s40, 7")
        A(f"s_lshl_b32 s{52+i}, s40, 7")
        A(f"s_mul_i32 s{60+i}, s40, {64*3072}")
    A("s_waitcnt lgkmcnt(0)")
    for (d, p, n) in ((20, 4, 2048*1024), (24, 6, 512*3072), (28, 10, 512*1024), (32, 8, 32*512)):
        A(f"s_mov_b32 s{d}, s{p}")
        A(f"s_mov_b32 s{d+1}, s{p+1}")
        A(f"s_mov_b32 s{d+2}, {n}")
        A(f"s_mov_b32 s{d+3}, 0x00020000")
    vm = VM(A)
    A(f"s_add_u32 m0, s44, {S2}")
    vm.issue("wphi", "buffer_load_dwordx4 v29, s[32:35], 0 offen lds")
    X = 128
    SL = [S0, S1, S2]
    def xdma(i):
        for j in range(4):
            A(f"s_add_u32 m0, s44, {SL[i%3]+1024*j}")
            if j: A(f"s_add_u32 s{52+i}, s{52+i}, 8192")
            vm.issue(f"x{i}", f"buffer_load_dwordx4 v{2+(j&1)}, s[20:23], s{52+i} offen lds")
    def wdma(tag, i, mat, m0base, m0off):
        A(f"s_add_u32 m0, {m0base}, {m0off}")
        A(f"s_add_u32 s41, s{60+i}, {1024*mat}")
        vm.issue(tag, "buffer_load_dwordx4 v4, s[24:27], s41 offen lds")
    for i in range(2): wdma("wk", i, 1, "s45", 4096*i)
    xdma(0)
    for i in range(2, 8): wdma("wk", i, 1, "s45", 4096*i)
    xdma(1)
    A("v_bfe_u32 v28, v26, 1, 3")
    A("v_xor_b32 v28, v28, v25")
    A("v_lshlrev_b32 v6, 7, v26")
    A("v_lshl_add_u32 v6, v28, 4, v6")
    A(f"s_add_u32 s40, s44, {S0}")
    A("v_add_u32 v6, s40, v6")
    for t in range(1, 4): A(f"v_xor_b32 v{6+t}, {32*t}, v6")
    A("v_and_b32 v28, 1, v23")
    A("v_lshlrev_b32 v30, 5, v28")
    A("v_and_b32 v31, 1, v22")
    A("v_lshl_add_u32 v30, v31, 4, v30")
    A("v_lshrrev_b32 v5, 1, v23")
    A("v_lshl_add_u32 v30, v5, 3, v30")
    A("v_lshlrev_b32 v29, 9, v28")
    A("v_lshl_add_u32 v29, v24, 5, v29")
    A("v_lshl_add_u32 v29, v31, 4, v29")
    A("v_lshl_add_u32 v29, v5, 3, v29")
    A(f"s_add_u32 s40, s44, {S2}")
    A("v_add_u32 v29, s40, v29")
    A("v_lshl_add_u32 v31, v25, 3, v24")
    A("v_lshl_add_u32 v10, v31, 6, v30")
    A(f"v_add_u32 v11, {S0}, v10")
    A("v_bfe_u32 v28, v1, 2, 1")
    A("v_cmp_eq_u32_e64 s[46:47], v28, v25")
    WP = 96
    vm.wait("wphi")
    for t in range(2):
        for sec in range(2):
            A(f"ds_read_b64_tr_b16 v[{WP+4*t+2*sec}:{WP+4*t+2*sec+1}], v29 offset:{256*t+128*sec}")
    A("s_mul_i32 s40, s36, %d" % (32*PVS))
    A(f"v_mul_u32_u24 v16, {PVS}, v26")
    A("v_add_u32 v16, s40, v16")
    A("v_lshl_add_u32 v15, v25, 6, v16")
    A("v_lshl_add_u32 v16, v25, 5, v16")
    A("v_add_u32 v16, 128, v16")
    A(f"s_mov_b32 s48, 0x{LOG2E:08x}")
    A("s_waitcnt lgkmcnt(0)")
    xdma(2)
    for q in range(8):
        A(f"v_cndmask_b32_e64 v{WP+q}, 0, v{WP+q}, s[46:47]")
    A("s_lshr_b32 s40, s38, 1")
    A("s_lshl_b32 s40, s40, 7")
    A("v_and_b32 v28, 1, v22")
    A("v_and_b32 v29, 7, v1")
    A("v_xor_b32 v28, v28, v29")
    A("v_lshlrev_b32 v12, 10, v21")
    A("v_lshl_add_u32 v12, v28, 4, v12")
    A("v_add_u32 v12, s40, v12")
    A("v_xor_b32 v13, 64, v12")
    A("s_lshl_b32 s40, s37, 17")
    A("s_lshl_b32 s41, s36, 15")
    A("s_add_u32 s40, s40, s41")
    A("s_lshl_b32 s41, s38, 10")
    A("s_add_u32 s40, s40, s41")
    A(f"s_add_u32 s40, s40, {OOFF}")
    A("v_and_b32 v14, 1, v22")
    A("v_lshlrev_b32 v14, 14, v14")
    A("v_lshl_add_u32 v14, v25, 9, v14")
    A("v_lshl_add_u32 v14, v27, 4, v14")
    A("v_add_u32 v14, s40, v14")
    A("v_lshl_add_u32 v28, v22, 2, v24")
    A(f"v_mul_u32_u24 v17, {PVS}, v28")
    A("v_lshl_add_u32 v17, v23, 3, v17")
    A("s_lshr_b32 s40, s36, 1")
    A("s_lshl_b32 s41, s40, 5")
    A(f"s_add_u32 s41, s41, {PVB+128}")
    A("v_add_u32 v18, s41, v17")
    A("s_lshl_b32 s41, s36, 5")
    A("v_add_u32 v17, s41, v17")
    A("s_and_b32 s41, s36, 1")
    A("s_lshl_b32 s41, s41, 1")
    A("s_lshl_b32 s42, s38, 2")
    A("s_add_u32 s41, s41, s42")
    A("s_mul_i32 s41, s41, 12288")
    A("s_lshl_b32 s42, s37, 8")
    A("s_add_u32 s41, s41, s42")
    A(f"s_add_u32 s41, s41, {KVOFF}")
    A("s_lshl_b32 s42, s40, 12")
    A("s_add_u32 s42, s42, s41")
    A("s_add_u32 s41, s41, 8192")
    A("v_mul_u32_u24 v19, 12288, v25")
    A("v_lshl_add_u32 v19, v27, 4, v19")
    A("v_and_b32 v28, 1, v22")
    A("v_lshl_add_u32 v19, v28, 3, v19")
    A("v_add_u32 v20, s41, v19")
    A("v_add_u32 v19, s42, v19")
    A("v_and_b32 v28, 1, v1")
    A("v_cmp_eq_u32_e64 s[50:51], s40, v28")
    A(f"v_mov_b32 v5, {BC_OFF}")
    AK, AV, EN, WF, WQH = 32, 48, 64, 80, 104
    T = [120, 121, 122, 123, 124, 125]
    vm.wait("wk")
    A("s_barrier")
    stamp()
    for i in range(8):
        wb = EN if (i & 1) else WF
        for t in range(4):
            for sec in range(2):
                b = wb + 4*t + 2*sec
                A(f"ds_read_b64_tr_b16 v[{b}:{b+1}], v10 offset:{4096*i+1024*t+256*sec}")
        vm.wait(f"x{i}")
        if i in (0, 7): stamp()
        for t in range(4):
            A(f"ds_read_b128 v[{X+16*i+4*t}:{X+16*i+4*t+3}], v{6+t} offset:{SL[i%3]-S0}")
        def mf():
            for t in range(4):
                b = wb + 4*t
                A(f"s_waitcnt lgkmcnt({3-t})")
                cin = "0" if (i == 0 and t == 0) else f"v[{AK}:{AK+15}]"
                A(f"v_mfma_f32_32x32x16_bf16 v[{AK}:{AK+15}], v[{b}:{b+3}], v[{X+16*i+4*t}:{X+16*i+4*t+3}], {cin}")
        mf()
        if i <= 4: xdma(i+3)
        elif i == 5:
            for q in range(4): wdma("wva", q, 2, "s44", S2+1024*q)
        elif i == 6:
            for q in range(4): wdma("wvb", 4+q, 2, "s44", S0+1024*q)
    for q in range(8):
        A(f"v_cvt_pk_bf16_f32 v{120+q}, v{AK+2*q}, v{AK+2*q+1}")
    A(f"v_mfma_f32_32x32x16_bf16 v[{AK}:{AK+15}], v[{WP}:{WP+3}], v[120:123], 0")
    A(f"v_mfma_f32_32x32x16_bf16 v[{AK}:{AK+15}], v[{WP+4}:{WP+7}], v[124:127], v[{AK}:{AK+15}]")
    if not noflag:
        vm.issue("flag", "global_load_dword v31, v5, s[16:17] sc1")
    for q in range(4): wdma("wqa", q, 0, "s44", S1+1024*q)
    stamp()
    OUT = [AK+q for q in range(8)] + [EN+q for q in range(8)]
    H, B, Tl = softmax_stream(AK, EN, OUT, T, "s48")
    for l in H: A(l)
    for q in range(4):
        vm.issue("wqb", f"buffer_load_dwordx4 v[{WQH+4*q}:{WQH+4*q+3}], v4, s[24:27], s{64+q} offen")
    def vaddr(i, t, sec):
        base = (S2 if i < 4 else S0) - S0
        return base + 4096*t + 1024*(i & 3) + 256*sec
    def vreads(n):
        i, t = n >> 2, n & 3
        b = WF + 4*(n & 3)
        return [f"ds_read_b64_tr_b16 v[{b+2*sec}:{b+2*sec+1}], v11 offset:{vaddr(i, t, sec)}" for sec in range(2)]
    def vitems(lo, hi):
        items = []
        pre = vreads(lo) + vreads(lo+1) + vreads(lo+2)
        items.append(pre)
        for n in range(lo, hi):
            i, t = n >> 2, n & 3
            b = WF + 4*(n & 3)
            it = []
            left = min(hi-1, n+2) - n
            it.append(f"s_waitcnt lgkmcnt({2*left})")
            cin = "0" if n == 0 else f"v[{AV}:{AV+15}]"
            it.append(f"v_mfma_f32_32x32x16_bf16 v[{AV}:{AV+15}], v[{b}:{b+3}], v[{X+16*i+4*t}:{X+16*i+4*t+3}], {cin}")
            if n + 3 < hi: it += vreads(n+3)
            items.append(it)
        return items
    vm.wait("wva")
    A("s_barrier")
    rest = interleave(A, B, vitems(0, 16), bud)
    stamp()
    vm.wait("wvb")
    A("s_barrier")
    rest = interleave(A, rest + Tl, vitems(16, 32), bud)
    for l in rest: A(l)
    for q in range(2):
        A(f"ds_write_b128 v15, v[{EN+4*q}:{EN+4*q+3}] offset:{32+16*q}")
    for q in range(2):
        A(f"ds_write_b128 v15, v[{AK+4*q}:{AK+4*q+3}] offset:{16*q}")
    for q in range(8):
        A(f"v_cvt_pk_bf16_f32 v{WF+q}, v{AV+2*q}, v{AV+2*q+1}")
        if q == 3: A(f"ds_write_b128 v16, v[{WF}:{WF+3}]")
    A(f"ds_write_b128 v16, v[{WF+4}:{WF+7}] offset:16")
    for q in range(4): A(f"v_mov_b32 v{120+q}, 0x3f803f80")
    stamp()
    if not noflag:
        A("s_mov_b32 s77, 0x40000")
        vm.wait("flag")
        lf = a.newlabel("Aflag"); lfd = a.newlabel("Aflagdone")
        a.label(lf)
        A("v_cmp_eq_u32 vcc, 0, v31")
        A(f"s_cbranch_vccz {lfd}")
        A("s_sub_u32 s77, s77, 1")
        A(f"s_cbranch_scc1 {lfd}")
        A("s_sleep 2")
        A("global_load_dword v31, v5, s[16:17] sc1")
        A("s_waitcnt vmcnt(0)")
        A(f"s_branch {lf}")
        a.label(lfd)
    vm.wait("wqa", " lgkmcnt(0)")
    A("s_barrier")
    stamp()
    WB = 64
    for u in range(4):
        for op, vr in ((0, 17), (1, 18)):
            for sec in range(2):
                b = WB + 8*u + 4*op + 2*sec
                A(f"ds_read_b64_tr_b16 v[{b}:{b+1}], v{vr} offset:{32*PVS*u+16*PVS*sec}")
    for u in range(4):
        b = WB + 8*u
        A(f"s_waitcnt lgkmcnt({14-4*u})")
        A(f"v_mfma_f32_16x16x32_bf16 v[{AK+4}:{AK+7}], v[{b}:{b+3}], v[120:123], {'0' if u == 0 else f'v[{AK+4}:{AK+7}]'}")
        A(f"s_waitcnt lgkmcnt({12-4*u})")
        A(f"v_mfma_f32_16x16x32_bf16 v[{AK}:{AK+3}], v[{b}:{b+3}], v[{b+4}:{b+7}], {'0' if u == 0 else f'v[{AK}:{AK+3}]'}")
    A(f"s_add_u32 s40, s44, {S2}")
    A("v_lshl_add_u32 v30, v1, 4, s40")
    A(f"v_cvt_pk_bf16_f32 v{AV+2}, v{AK+4}, v{AK+5}")
    A(f"v_cvt_pk_bf16_f32 v{AV+3}, v{AK+6}, v{AK+7}")
    A(f"v_cvt_pk_bf16_f32 v{AV}, v{AK}, v{AK+1}")
    A(f"v_cvt_pk_bf16_f32 v{AV+1}, v{AK+2}, v{AK+3}")
    for q in (2, 3, 0, 1): A(f"v_min_u32 v{AV+q}, -2, v{AV+q}")
    vm.issue("pub", f"global_store_dwordx2 v19, v[{AV}:{AV+1}], s[18:19] sc1")
    A("s_mov_b64 exec, s[50:51]")
    vm.issue("pub", f"global_store_dwordx2 v20, v[{AV+2}:{AV+3}], s[18:19] sc1")
    A("s_mov_b64 exec, -1")
    stamp()
    vm.wait("wqb")
    for j in range(4):
        A(f"ds_write_b128 v30, v[{WQH+4*j}:{WQH+4*j+3}] offset:{1024*j}")
    def wodma(g0, n):
        A(f"s_mul_i32 s40, s36, {n}")
        A(f"s_add_u32 s40, s40, {g0}")
        A("s_lshl_b32 s41, s40, 13")
        A("s_lshl_b32 s40, s40, 10")
        for q in range(n):
            A(f"s_add_u32 m0, s40, {1024*q}")
            vm.issue("wo", f"buffer_load_dwordx4 v{12+(q&1)}, s[28:31], s41 offen lds")
            if q < n-1: A("s_add_u32 s41, s41, 8192")
    wodma(32, 4)
    def qreads(i):
        L = []
        base = (S1 if i < 4 else S2) - S0
        for t in range(4):
            for sec in range(2):
                b = WB + 16*(i & 1) + 4*t + 2*sec
                L.append(f"ds_read_b64_tr_b16 v[{b}:{b+1}], v11 offset:{base+4096*t+1024*(i&3)+256*sec}")
        return L
    for half in range(2):
        if half == 1:
            A("s_barrier")
            for l in qreads(4): A(l)
            wodma(0, 8)
        else:
            for l in qreads(0): A(l)
        for i in range(4*half, 4*half+4):
            nxt = qreads(i+1) if (i & 3) < 3 else []
            for t in range(4):
                b = WB + 16*(i & 1) + 4*t
                if nxt:
                    A(nxt[2*t]); A(nxt[2*t+1])
                    A(f"s_waitcnt lgkmcnt({8})")
                else:
                    A(f"s_waitcnt lgkmcnt({6-2*t})")
                cin = "0" if (i == 0 and t == 0) else f"v[{AK}:{AK+15}]"
                A(f"v_mfma_f32_32x32x16_bf16 v[{AK}:{AK+15}], v[{b}:{b+3}], v[{X+16*i+4*t}:{X+16*i+4*t+3}], {cin}")
    A("s_barrier")
    stamp()
    wodma(48, 4)
    A("s_lshl_b32 s40, s38, 2")
    A("s_add_u32 s40, s40, s36")
    A("s_mul_i32 s40, s40, 12288")
    A(f"s_add_u32 s40, s40, {KVOFF}")
    A("v_lshl_add_u32 v21, v1, 4, s40")
    A("v_add_u32 v22, 0x1000, v21")
    A("v_add_u32 v23, 0x2000, v21")
    PL = 144
    def h1load(i):
        ig, pg = i // 4, i % 4
        return f"global_load_dwordx4 v[{PL+4*i}:{PL+4*i+3}], v{21+ig}, s[18:19] offset:{1024*pg} sc1"
    for q in range(8):
        A(f"v_cvt_pk_bf16_f32 v{120+q}, v{AK+2*q}, v{AK+2*q+1}")
    A(f"v_mfma_f32_32x32x16_bf16 v[{AV}:{AV+15}], v[{WP}:{WP+3}], v[120:123], 0")
    A(f"v_mfma_f32_32x32x16_bf16 v[{AV}:{AV+15}], v[{WP+4}:{WP+7}], v[124:127], v[{AV}:{AV+15}]")
    for i in range(12): A(h1load(i))
    A("v_and_b32 v28, 1, v1")
    A("v_lshlrev_b32 v28, 4, v28")
    A("v_mov_b32 v29, 0x3f80")
    A("v_lshlrev_b32 v29, v28, v29")
    A("v_lshrrev_b32 v28, 1, v27")
    for q in range(4):
        A(f"v_cmp_eq_u32 vcc, {q}, v28")
        A(f"v_cndmask_b32 v{116+q}, 0, v29, vcc")
    A("v_lshrrev_b32 v28, 4, v1")
    A("v_mul_u32_u24 v17, 48, v25")
    A("v_add_u32 v17, v17, v27")
    A(f"v_mul_u32_u24 v17, {KVS}, v17")
    A("v_and_b32 v28, 1, v28")
    A("v_lshl_add_u32 v17, v28, 3, v17")
    A("s_lshl_b32 s40, s36, 4")
    A(f"s_add_u32 s40, s40, {KVI}")
    A("v_add_u32 v17, s40, v17")
    A("v_lshrrev_b32 v28, 3, v26")
    A("v_and_b32 v29, 3, v1")
    A("v_lshl_add_u32 v28, v28, 2, v29")
    A("v_lshl_add_u32 v28, v25, 4, v28")
    A("v_add_u32 v29, 48, v27")
    A("v_cndmask_b32_e64 v18, v29, v28, s[46:47]")
    A("v_add_u32 v28, 32, v25")
    A("v_cndmask_b32_e64 v19, v29, v28, s[46:47]")
    A(f"v_mul_u32_u24 v18, {KVS}, v18")
    A(f"v_mul_u32_u24 v19, {KVS}, v19")
    A(f"v_add_u32 v18, {KVI}, v18")
    A(f"v_add_u32 v19, {KVI}, v19")
    PQ = 128
    H, B, Tl = softmax_stream(AV, EN, [PQ+q for q in range(16)], T, "s48")
    for l in H + B + Tl: A(l)
    stamp()
    A("s_mov_b32 s77, 0x10000")
    lp = a.newlabel("Ah1"); lpd = a.newlabel("Ah1done")
    a.label(lp)
    A("s_waitcnt vmcnt(0)")
    for i in range(12):
        b = PL + 4*i
        t = 120 + (i & 3)
        A(f"v_max3_u32 v{t}, v{b}, v{b+1}, v{b+2}")
        A(f"v_max_u32 v{t}, v{t}, v{b+3}")
        A(f"v_cmp_eq_u32_e64 s[{52+2*i}:{53+2*i}], -1, v{t}")
    A("s_or_b64 s[40:41], s[52:53], s[54:55]")
    for i in range(2, 12): A(f"s_or_b64 s[40:41], s[40:41], s[{52+2*i}:{53+2*i}]")
    A(f"s_cbranch_scc0 {lpd}")
    A("s_sub_u32 s77, s77, 1")
    A(f"s_cbranch_scc1 {lpd}")
    for i in range(12):
        A(f"s_mov_b64 exec, s[{52+2*i}:{53+2*i}]")
        A(h1load(i))
    A("s_mov_b64 exec, -1")
    A(f"s_branch {lp}")
    a.label(lpd)
    A("s_mov_b32 s76, s77")
    stamp()
    for pg in range(4):
        for ig in range(3):
            b = PL + 4*(4*ig+pg)
            d = AK + 4*ig
            A(f"v_mfma_f32_16x16x32_bf16 v[{d}:{d+3}], v[116:119], v[{b}:{b+3}], {'0' if pg == 0 else f'v[{d}:{d+3}]'}")
    for ig in range(3):
        d = AK + 4*ig
        A(f"v_cvt_pk_bf16_f32 v{120+2*ig}, v{d}, v{d+1}")
        A(f"v_cvt_pk_bf16_f32 v{121+2*ig}, v{d+2}, v{d+3}")
        A(f"ds_write_b64 v17, v[{120+2*ig}:{121+2*ig}] offset:{16*KVS*ig}")
    A("s_waitcnt lgkmcnt(0)")
    A("s_barrier")
    for t in range(4):
        A(f"ds_read_b128 v[{WB+8*t}:{WB+8*t+3}], v19 offset:{16*t}")
        A(f"ds_read_b128 v[{WB+8*t+4}:{WB+8*t+7}], v18 offset:{16*t}")
    for t in range(4):
        A(f"s_waitcnt lgkmcnt({7-2*t})")
        A(f"v_mfma_f32_32x32x16_bf16 v[{AV}:{AV+15}], v[{WB+8*t}:{WB+8*t+3}], v[{PQ+4*t}:{PQ+4*t+3}], {'0' if t == 0 else f'v[{AV}:{AV+15}]'}")
        A(f"s_waitcnt lgkmcnt({6-2*t})")
        A(f"v_mfma_f32_32x32x16_bf16 v[{AK}:{AK+15}], v[{WB+8*t+4}:{WB+8*t+7}], v[{PQ+4*t}:{PQ+4*t+3}], {'0' if t == 0 else f'v[{AK}:{AK+15}]'}")
    A("s_lshl_b32 s40, s37, 3")
    A("s_and_b32 s41, s38, 1")
    A("s_lshl_b32 s41, s41, 2")
    A("s_add_u32 s40, s40, s41")
    A("s_add_u32 s40, s40, s36")
    A("s_lshl_b32 s41, s40, 14")
    A(f"s_add_u32 s41, s41, {OOFF}")
    A("v_lshl_add_u32 v21, v1, 4, s41")
    for q in range(1, 4): A(f"v_add_u32 v{21+q}, {0x1000*q}, v21")
    A("s_lshl_b32 s41, s40, 15")
    A("s_lshr_b32 s42, s38, 1")
    A("s_lshl_b32 s42, s42, 7")
    A("s_add_u32 s41, s41, s42")
    A("v_lshrrev_b32 v28, 4, v1")
    A("v_lshlrev_b32 v20, 11, v27")
    A("v_lshl_add_u32 v20, v28, 4, v20")
    A("v_add_u32 v20, s41, v20")
    A("v_bfe_u32 v29, v1, 2, 2")
    A("v_lshl_add_u32 v2, v28, 3, v29")
    A("v_lshlrev_b32 v2, 7, v2")
    A("v_lshrrev_b32 v29, 1, v29")
    A("v_and_b32 v30, 3, v1")
    A("v_xor_b32 v29, v29, v30")
    A("v_lshl_add_u32 v2, v29, 4, v2")
    A("v_and_b32 v29, 1, v28")
    A("v_lshl_add_u32 v2, v29, 6, v2")
    A("v_cmp_eq_u32_e64 s[78:79], 1, v29")
    A("v_and_b32 v29, 1, v30")
    A("v_lshl_add_u32 v2, v29, 3, v2")
    A("v_xor_b32 v3, 8, v2")
    A("v_xor_b32 v4, 64, v2")
    A("v_xor_b32 v5, 0x48, v2")
    A(f"v_add_f32 v120, 0x{f32bits(1e-6):08x}, v{AV}")
    A("v_rcp_f32 v120, v120")
    for q in range(8):
        A(f"v_mul_f32 v{AK+2*q}, v{AK+2*q}, v120")
        A(f"v_mul_f32 v{AK+2*q+1}, v{AK+2*q+1}, v120")
        A(f"v_cvt_pk_bf16_f32 v{AV+8+q}, v{AK+2*q}, v{AK+2*q+1}")
        A(f"v_min_u32 v{AV+8+q}, -2, v{AV+8+q}")
        if q == 3: A(f"global_store_dwordx4 v14, v[{AV+8}:{AV+11}], s[18:19] sc1")
    A(f"global_store_dwordx4 v14, v[{AV+12}:{AV+15}], s[18:19] offset:256 sc1")
    stamp()
    OF = 192
    def h2load(k):
        return f"global_load_dwordx4 v[{OF+4*k}:{OF+4*k+3}], v{21+(k>>2)}, s[18:19] offset:{1024*(k&3)} sc1"
    def woreads(k):
        L = []
        off = 4096*k
        for t in range(4):
            for sec in range(2):
                b = WB + 16*(k & 1) + 4*t + 2*sec
                L.append(f"ds_read_b64_tr_b16 v[{b}:{b+1}], v{2+t} offset:{off+512*sec}")
        return L
    ACC = 128
    for q in range(16): A(f"v_mov_b32 v{ACC+q}, 0")
    A("s_mov_b32 s43, 0")
    A("s_mov_b32 s77, 0x10000")
    MS = 44
    for k in range(16): A(f"s_mov_b64 s[{MS+2*k}:{MS+2*k+1}], -1")
    l2 = a.newlabel("Ah2"); l2d = a.newlabel("Ah2done")
    a.label(l2)
    for k in range(16):
        A(f"s_mov_b64 exec, s[{MS+2*k}:{MS+2*k+1}]")
        A(h2load(k))
    A("s_mov_b64 exec, -1")
    for l in woreads(0): A(l)
    for k in range(16):
        ln = a.newlabel("Ah2n")
        if k < 15:
            for l in woreads(k+1): A(l)
        A(f"s_bitcmp1_b32 s43, {k}")
        A(f"s_cbranch_scc1 {ln}")
        b = OF + 4*k
        A(f"s_waitcnt vmcnt({15-k})")
        A(f"v_max3_u32 v120, v{b}, v{b+1}, v{b+2}")
        A(f"v_max_u32 v120, v120, v{b+3}")
        A(f"v_cmp_eq_u32_e64 s[{MS+2*k}:{MS+2*k+1}], -1, v120")
        A(f"s_cmp_lg_u64 s[{MS+2*k}:{MS+2*k+1}], 0")
        A(f"s_cbranch_scc1 {ln}")
        A(f"s_bitset1_b32 s43, {k}")
        A(f"s_waitcnt lgkmcnt({8 if k < 15 else 0})")
        for t in range(4):
            wb = WB + 16*(k & 1) + 4*t
            A(f"v_mfma_f32_16x16x32_bf16 v[{ACC+4*t}:{ACC+4*t+3}], v[{wb}:{wb+3}], v[{b}:{b+3}], v[{ACC+4*t}:{ACC+4*t+3}]")
        a.label(ln)
        A("s_nop 1")
    A("s_waitcnt lgkmcnt(0)")
    A("s_cmp_eq_u32 s43, 0xffff")
    A(f"s_cbranch_scc1 {l2d}")
    A("s_sub_u32 s77, s77, 1")
    A(f"s_cbranch_scc0 {l2}")
    a.label(l2d)
    stamp()
    A("s_nop 7")
    for u in range(2):
        e, o = ACC + 8*u, ACC + 8*u + 4
        A(f"v_cvt_pk_bf16_f32 v120, v{e}, v{e+1}")
        A(f"v_cvt_pk_bf16_f32 v121, v{e+2}, v{e+3}")
        A(f"v_cvt_pk_bf16_f32 v122, v{o}, v{o+1}")
        A(f"v_cvt_pk_bf16_f32 v123, v{o+2}, v{o+3}")
        d = WB + 4*u
        A(f"v_cndmask_b32_e64 v{d}, v120, v122, s[78:79]")
        A(f"v_cndmask_b32_e64 v{d+1}, v121, v123, s[78:79]")
        A(f"v_cndmask_b32_e64 v{d+2}, v122, v120, s[78:79]")
        A(f"v_cndmask_b32_e64 v{d+3}, v123, v121, s[78:79]")
        A(f"global_store_dwordx4 v20, v[{d}:{d+3}], s[12:13] offset:{64*u}")
    if stamps:
        A("s_waitcnt vmcnt(0)")
        stamp()
        n = nst[0]
        assert n <= 15
        A("s_waitcnt lgkmcnt(0)")
        A("s_lshl_b32 s38, s2, 2")
        A("s_add_u32 s38, s38, s36")
        A("s_lshl_b32 s38, s38, 7")
        A(f"s_add_u32 s38, s38, {stamps}")
        A("v_mov_b32 v2, s38")
        for i in range(n):
            A(f"v_mov_b32 v4, s{streg(i)}")
            A(f"v_mov_b32 v5, s{streg(i)+1}")
            A(f"global_store_dwordx2 v2, v[4:5], s[18:19] offset:{8*i}")
        A("v_mov_b32 v4, s77")
        A("v_mov_b32 v5, s76")
        A(f"global_store_dwordx2 v2, v[4:5], s[18:19] offset:{8*n}")
        A("s_waitcnt vmcnt(0)")
        print("A stamps", n)
    A("s_endpgm")

def emit_S(a, stamps=None):
    A = a
    A("s_load_dwordx2 s[4:5], s[0:1], 32")
    A("s_load_dwordx4 s[16:19], s[0:1], 112")
    A("v_and_b32 v1, 63, v0")
    A("v_lshrrev_b32 v2, 6, v0")
    A("s_and_b32 s40, s2, 7")
    A("s_lshr_b32 s41, s2, 4")
    A("v_readfirstlane_b32 s36, v2")
    A("s_lshl_b32 s42, s41, 3")
    A("s_add_u32 s42, s42, s40")
    A("s_bitcmp1_b32 s2, 3")
    lu = a.newlabel("Su"); lj = a.newlabel("Sjoin"); le = a.newlabel("Send")
    A(f"s_cbranch_scc1 {lu}")
    A("s_mul_i32 s43, s42, 12288")
    A("s_mul_i32 s44, s36, 3072")
    A("s_add_u32 s43, s43, s44")
    A(f"s_add_u32 s43, s43, {KVOFF}")
    A("v_lshl_add_u32 v3, v1, 4, s43")
    A("s_lshl_b32 s43, s42, 15")
    A("s_lshl_b32 s44, s36, 13")
    A("s_add_u32 s43, s43, s44")
    A(f"s_add_u32 s43, s43, {OOFF}")
    A("v_lshl_add_u32 v4, v1, 4, s43")
    A("v_add_u32 v5, 0x1000, v4")
    for i in range(4): A(f"v_mov_b32 v{8+i}, -1")
    A("v_mov_b32 v6, 0")
    A(f"v_mov_b32 v7, {BC_OFF}")
    A("s_waitcnt lgkmcnt(0)")
    for i in range(3): A(f"global_store_dwordx4 v3, v[8:11], s[18:19] offset:{1024*i} sc1")
    for i in range(8): A(f"global_store_dwordx4 v{4+(i>>2)}, v[8:11], s[18:19] offset:{1024*(i&3)} sc1")
    A(f"s_branch {lj}")
    a.label(lu)
    A("s_lshl_b32 s43, s41, 18")
    A("s_lshl_b32 s44, s36, 16")
    A("s_add_u32 s43, s43, s44")
    A("s_lshl_b32 s44, s40, 7")
    A("s_add_u32 s43, s43, s44")
    A("v_lshrrev_b32 v3, 3, v1")
    A("v_bfe_u32 v4, v1, 4, 1")
    A("v_and_b32 v5, 7, v1")
    A("v_xor_b32 v4, v4, v5")
    A("v_lshlrev_b32 v3, 10, v3")
    A("v_lshl_add_u32 v3, v4, 4, v3")
    A("v_add_u32 v3, s43, v3")
    A("s_lshl_b32 s45, s36, 13")
    A("s_waitcnt lgkmcnt(0)")
    A("s_mov_b32 s20, s4"); A("s_mov_b32 s21, s5"); A(f"s_mov_b32 s22, {2048*1024}"); A("s_mov_b32 s23, 0x00020000")
    for j in range(8):
        if j & 3: A(f"v_xor_b32 v4, {32*(j&3)}, v3")
        A(f"s_add_u32 m0, s45, {1024*j}")
        A(f"s_mov_b32 s43, {8192*j}")
        A(f"buffer_load_dwordx4 v{4 if j&3 else 3}, s[20:23], s43 offen lds")
    A("v_lshrrev_b32 v22, 4, v1")
    A("v_and_b32 v23, 3, v1")
    A("v_bfe_u32 v24, v1, 2, 2")
    A("v_lshrrev_b32 v25, 5, v1")
    A("v_lshl_add_u32 v26, v25, 2, v23")
    A("v_lshl_add_u32 v26, v26, 3, v24")
    A("v_lshlrev_b32 v26, 7, v26")
    A("v_lshrrev_b32 v27, 1, v24")
    A("v_lshl_add_u32 v27, v23, 1, v27")
    A("v_lshl_add_u32 v26, v27, 4, v26")
    A("v_and_b32 v27, 1, v22")
    A("v_lshl_add_u32 v26, v27, 3, v26")
    A("v_add_u32 v26, s45, v26")
    A("s_lshl_b32 s43, s40, 18")
    A("s_lshl_b32 s44, s41, 11")
    A("s_add_u32 s43, s43, s44")
    A("s_lshl_b32 s44, s36, 9")
    A("s_add_u32 s43, s43, s44")
    A(f"s_add_u32 s43, s43, {UTOFF}")
    A("v_lshlrev_b32 v28, 14, v27")
    A("v_lshl_add_u32 v28, v25, 8, v28")
    A("v_and_b32 v29, 15, v1")
    A("v_lshl_add_u32 v28, v29, 4, v28")
    A("v_add_u32 v28, s43, v28")
    A("v_mov_b32 v6, 4")
    A(f"v_mov_b32 v7, {BU_OFF}")
    A("s_waitcnt vmcnt(0)")
    for q in range(8):
        A(f"v_xor_b32 v30, {16*q}, v26")
        for sec in range(2):
            A(f"ds_read_b64_tr_b16 v[{32+4*q+2*sec}:{33+4*q+2*sec}], v30 offset:{512*sec}")
    for q in range(8):
        A(f"s_waitcnt lgkmcnt({14-2*q})")
        A(f"global_store_dwordx4 v28, v[{32+4*q}:{35+4*q}], s[18:19] sc1")
        if q < 7: A("v_add_u32 v28, 0x8000, v28")
    a.label(lj)
    A("s_waitcnt vmcnt(0)")
    A("s_barrier")
    A("s_cmp_lg_u32 s36, 0")
    A(f"s_cbranch_scc1 {le}")
    A("v_mov_b32 v8, 1")
    A("s_mov_b64 exec, 1")
    A("global_atomic_add v9, v6, v8, s[16:17] sc0 sc1")
    A("s_waitcnt vmcnt(0)")
    A("v_cmp_eq_u32 vcc, 63, v9")
    A(f"s_cbranch_vccz {le}")
    A("global_store_dword v7, v8, s[16:17] sc1")
    a.label(le)
    A("s_endpgm")
```

```python
import struct, math
from asmlib import *
from genA2 import UTOFF, BU_OFF

def f32bits(x): return struct.unpack("<I", struct.pack("<f", x))[0]
def f32(x): return struct.unpack("<f", struct.pack("<f", x))[0]
LOG2E = math.log2(math.e)
L_HI = f32bits(LOG2E)
L_LO = f32bits(LOG2E - f32(LOG2E))
LN2 = f32bits(math.log(2.0))

WSZ = 20480
UOFF = 0
KOFF = 4096
ROWS = 288
LIN = 8192
CMP = 0

def emit_B(a, dbgK=False, stamps=None, prio=None):
    A = a
    nst = [0]
    def stamp():
        if stamps:
            i = nst[0]; nst[0] += 1
            A(f"s_memtime s[{64+2*i}:{65+2*i}]")
            A("s_waitcnt lgkmcnt(0)")
    stamp()
    A("s_load_dwordx16 s[4:19], s[0:1], 32")
    A("s_load_dwordx4 s[20:23], s[0:1], 96")
    A("s_load_dwordx4 s[40:43], s[0:1], 112")
    if prio is not None: A(f"s_setprio {prio}")
    A("v_and_b32 v1, 63, v0")
    A("v_lshrrev_b32 v2, 6, v0")
    A("s_and_b32 s25, s2, 7")
    A("s_lshr_b32 s26, s2, 3")
    A("v_readfirstlane_b32 s24, v2")
    A("s_lshl_b32 s25, s25, 6")
    A("s_lshl_b32 s26, s26, 2")
    A("s_add_u32 s25, s25, s26")
    A("s_add_u32 s26, s25, s24")
    A("s_mul_i32 s27, s24, %d" % WSZ)
    A("s_lshl_b32 s28, s26, 8")
    A("v_lshlrev_b32 v24, 2, v1")
    A("v_add_u32 v25, s28, v24")
    A("s_lshl_b32 s29, s26, 1")
    A("v_mov_b32 v26, s29")
    A("s_lshl_b32 s30, s25, 1")
    A("s_lshl_b32 s38, s25, 12")
    A("s_lshl_b32 s39, s24, 12")
    A("s_add_u32 s38, s38, s39")
    A(f"s_add_u32 s38, s38, {UTOFF}")
    A("v_lshl_add_u32 v27, v1, 4, s38")
    A(f"v_mov_b32 v28, {BU_OFF}")
    A("s_mov_b32 s32, 0x05040100")
    A("s_mov_b32 s33, 0x07060302")
    A("s_mov_b32 s34, 0x01000100")
    A("s_mov_b32 s35, 0x03020302")
    A("s_waitcnt lgkmcnt(0)")
    A("global_load_ushort v30, v26, s[18:19]")
    A("global_load_ushort v31, v26, s[20:21]")
    for i in range(6):
        A(f"global_load_dword v{2+i}, v25, s[{6+2*i}:{7+2*i}]")
    A("s_add_u32 s31, s27, %d" % KOFF)
    A("v_add_u32 v32, s31, v24")
    A("v_and_b32 v35, 15, v1")
    A("v_lshrrev_b32 v36, 4, v1")
    A("v_mul_u32_u24 v33, %d, v35" % ROWS)
    A("v_lshl_add_u32 v33, v36, 4, v33")
    A("v_add_u32 v33, s31, v33")
    A("v_min_u32 v34, 8, v35")
    A("v_mul_u32_u24 v34, %d, v34" % ROWS)
    A("v_lshl_add_u32 v34, v36, 4, v34")
    A("v_add_u32 v34, s31, v34")
    A("v_add_u32 v34, %d, v34" % (48*ROWS))
    D = 40
    for i in range(12):
        A(f"v_mov_b32 v{D+i}, 0")
    A("v_mov_b32 v37, 0x3f80")
    A("s_waitcnt vmcnt(6)")
    A("v_lshlrev_b32 v30, 16, v30")
    A("s_mov_b32 s36, 0x%08x" % L_HI)
    A("v_mul_f32 v38, s36, v30")
    A("v_fma_f32 v39, v30, s36, -v38")
    A("v_fmac_f32 v39, 0x%08x, v30" % L_LO)
    A("v_exp_f32 v38, v38")
    A("v_mul_f32 v39, 0x%08x, v39" % LN2)
    A("v_fmac_f32 v38, v38, v39")
    A("v_cvt_pk_bf16_f32 v38, v38, v38")
    A("v_lshlrev_b32 v30, 16, v38")
    A("v_lshlrev_b32 v31, 16, v31")
    A("v_cmp_eq_u32 vcc, 0, v1")
    A("v_cndmask_b32 v31, 0, v31, vcc")
    A("s_mov_b32 s37, 0")
    A("s_waitcnt vmcnt(0)")
    stamp()
    loop = a.newlabel("Bpass")
    a.label(loop)
    T0 = 52
    are, aim, bre, bim, cre, cim = range(T0, T0+6)
    for i in range(6):
        A(f"v_lshlrev_b32 v{T0+i}, 16, v{2+i}")
    for i in range(6):
        A(f"v_lshrrev_b32 v{2+i}, 16, v{2+i}")
    a2, phi = 58, 59
    A(f"v_mul_f32 v{a2}, v30, v{are}")
    A(f"v_mul_f32 v{phi}, v30, v{aim}")
    A(f"v_mul_f32 v{bre}, v30, v{bre}")
    A(f"v_mul_f32 v{bim}, v30, v{bim}")
    A(f"v_mul_f32 v{a2}, s36, v{a2}")
    A(f"v_mul_f32 v{phi}, 0.15915494, v{phi}")
    F = (60, 61)
    A(f"v_mul_f32_e64 v{F[0]}, v{cim}, -v{bim}")
    A(f"v_mul_f32_e64 v{F[1]}, v{cim}, -v{bre}")
    A(f"v_fmac_f32 v{F[0]}, v{cre}, v{bre}")
    A(f"v_fma_f32 v{F[1]}, -v{cre}, v{bim}, v{F[1]}")
    Z1, Z8, Z128 = (62, 63), (64, 65), (66, 67)
    tmp = [68, 69, 70, 71, 72, 73, 74, 75, 76]
    def anchor(z, g, t):
        e, p, s = t
        if g == 1:
            A(f"v_exp_f32 v{e}, v{a2}")
            A(f"v_fract_f32 v{p}, v{phi}")
        else:
            A(f"v_mul_f32 v{e}, 0x{f32bits(float(g)):08x}, v{a2}")
            A(f"v_mul_f32 v{p}, 0x{f32bits(float(g)):08x}, v{phi}")
            A(f"v_exp_f32 v{e}, v{e}")
            A(f"v_fract_f32 v{p}, v{p}")
        A(f"v_sin_f32 v{s}, v{p}")
        A(f"v_cos_f32 v{p}, v{p}")
    anchor(Z1, 1, tmp[0:3]); anchor(Z8, 8, tmp[3:6]); anchor(Z128, 128, tmp[6:9])
    for z, t, conj in ((Z1, tmp[0:3], 0), (Z8, tmp[3:6], 1), (Z128, tmp[6:9], 0)):
        e, p, s = t
        A(f"v_mul_f32 v{z[0]}, v{e}, v{p}")
        if conj:
            A(f"v_mul_f32_e64 v{z[1]}, v{e}, -v{s}")
        else:
            A(f"v_mul_f32 v{z[1]}, v{e}, v{s}")
    pk = [78, 79, 80, 81]
    pkc = [0]
    def put(row, z):
        r = pk[pkc[0] % 4]; pkc[0] += 1
        A(f"v_cvt_pk_bf16_f32 v{r}, v{z[0]}, v{z[1]}")
        A(f"ds_write_b32 v32, v{r} offset:{row*ROWS}")
    def cmul(d, x, y):
        A(f"v_mul_f32_e64 v{d[0]}, v{x[1]}, -v{y[1]}")
        A(f"v_mul_f32 v{d[1]}, v{x[1]}, v{y[0]}")
        A(f"v_fmac_f32 v{d[0]}, v{x[0]}, v{y[0]}")
        A(f"v_fmac_f32 v{d[1]}, v{x[0]}, v{y[1]}")
    Fb = [F, (82, 83)]
    put(0, F)
    for c in range(1, 16):
        cmul(Fb[c & 1], Fb[(c-1) & 1], Z8)
        put(c, Fb[c & 1])
    R = [None, Z1] + [(84+2*i, 85+2*i) for i in range(6)]
    A(f"ds_write_b32 v32, v37 offset:{16*ROWS}")
    put(17, Z1)
    for r in range(2, 8):
        cmul(R[r], R[r-1], Z1)
        put(16+r, R[r])
    Qb = [(96, 97), (98, 99)]
    P = [(100, 101), (102, 103)]
    pc = 0
    Q = Z128
    for q in range(1, 17):
        if q > 1:
            Qn = Qb[q & 1]
            cmul(Qn, Q, Z128)
            Q = Qn
        if q == 1:
            put(24, Q)
            for r in range(1, 8):
                cmul(P[pc & 1], R[r], Q); put(24+r, P[pc & 1]); pc += 1
        elif q in (2, 3):
            base = 32 + 4*(q-2)
            put(base, Q)
            for r in range(1, 4):
                cmul(P[pc & 1], R[2*r], Q); put(base+r, P[pc & 1]); pc += 1
        elif q < 8:
            base = 40 + 2*(q-4)
            put(base, Q)
            cmul(P[pc & 1], R[4], Q); put(base+1, P[pc & 1]); pc += 1
        else:
            put(48 + q - 8, Q)
    A("global_load_dword v29, v28, s[40:41] sc1")
    A("s_waitcnt lgkmcnt(0)")
    OP = 104
    for k in range(4):
        b = OP + 16*k
        A(f"ds_read_b128 v[{b}:{b+3}], v33 offset:{64*k}")
        A(f"ds_read_b128 v[{b+4}:{b+7}], v33 offset:{64*k+16*ROWS}")
        A(f"ds_read_b128 v[{b+8}:{b+11}], v33 offset:{64*k+32*ROWS}")
        A(f"ds_read_b128 v[{b+12}:{b+15}], v34 offset:{64*k}")
    for k in range(4):
        b = OP + 16*k
        A(f"s_waitcnt lgkmcnt({12-4*k})")
        for t in range(3):
            A(f"v_mfma_f32_16x16x32_bf16 v[{D+4*t}:{D+4*t+3}], v[{b+4+4*t}:{b+7+4*t}], v[{b}:{b+3}], v[{D+4*t}:{D+4*t+3}]")
    A("s_add_u32 s37, s37, 1")
    A("s_cmp_lt_u32 s37, 2")
    A(f"s_cbranch_scc1 {loop}")
    stamp()
    A("s_mov_b32 s38, 0x40000")
    lf = a.newlabel("Bflag"); lfd = a.newlabel("Bflagdone")
    a.label(lf)
    A("s_waitcnt vmcnt(0)")
    A("v_cmp_eq_u32 vcc, 0, v29")
    A(f"s_cbranch_vccz {lfd}")
    A("s_sub_u32 s38, s38, 1")
    A(f"s_cbranch_scc1 {lfd}")
    A("s_sleep 2")
    A("global_load_dword v29, v28, s[40:41] sc1")
    A(f"s_branch {lf}")
    a.label(lfd)
    for j in range(4):
        A(f"global_load_dwordx4 v[{8+4*j}:{11+4*j}], v27, s[42:43] offset:{1024*j} sc1")
    stamp()
    A(f"v_add_f32 v{D}, v{D}, v31")
    for t in range(3):
        A(f"v_cvt_pk_bf16_f32 v{72+2*t}, v{D+4*t}, v{D+4*t+1}")
        A(f"v_cvt_pk_bf16_f32 v{73+2*t}, v{D+4*t+2}, v{D+4*t+3}")
    A("v_lshrrev_b32 v53, 1, v36")
    A("v_lshlrev_b32 v53, 8, v53")
    A("v_lshl_add_u32 v53, v35, 4, v53")
    A("v_and_b32 v54, 1, v36")
    A("v_lshl_add_u32 v53, v54, 3, v53")
    A("v_add_u32 v53, s31, v53")
    A(f"ds_write_b64 v53, v[72:73] offset:{LIN}")
    A("v_cmp_gt_u32 vcc, 2, v36")
    A("v_lshlrev_b32 v54, 2, v35")
    A("v_lshlrev_b32 v55, 3, v35")
    A("v_cndmask_b32 v54, v54, v55, vcc")
    A("v_lshl_add_u32 v54, v36, 7, v54")
    A("v_add_u32 v54, s31, v54")
    A("v_cndmask_b32 v55, 64, 4, vcc")
    A("v_add_u32 v55, v54, v55")
    A(f"ds_write_b32 v54, v74 offset:{CMP}")
    A(f"ds_write_b32 v55, v75 offset:{CMP}")
    A("v_lshlrev_b32 v78, 1, v35")
    A("v_lshl_add_u32 v78, v36, 7, v78")
    A("v_add_u32 v78, s31, v78")
    A(f"ds_write_b16 v78, v76 offset:{CMP+512}")
    A(f"ds_write_b16_d16_hi v78, v76 offset:{CMP+512+32}")
    A(f"ds_write_b16 v78, v77 offset:{CMP+512+64}")
    A(f"ds_write_b16_d16_hi v78, v77 offset:{CMP+512+96}")
    A("v_mov_b32 v80, 0")
    A("v_mov_b32 v81, 0")
    A("v_mov_b32 v79, s31")
    A(f"ds_write_b64 v79, v[80:81] offset:{LIN-8}")
    A("v_lshl_add_u32 v82, v1, 3, s31")
    A("v_lshl_add_u32 v83, v1, 4, s31")
    A("v_lshl_add_u32 v79, v1, 5, s31")
    A("s_waitcnt lgkmcnt(0)")
    A(f"ds_read_b64 v[84:85], v82 offset:{CMP}")
    A(f"ds_read_u16 v86, v82 offset:{CMP+8}")
    A(f"ds_read_b32 v87, v32 offset:{CMP+256}")
    A(f"ds_read_u16 v88, v32 offset:{CMP+260}")
    A(f"ds_read_b32 v89, v32 offset:{CMP+512}")
    A(f"ds_read_u16 v90, v32 offset:{CMP+516}")
    A("s_waitcnt lgkmcnt(4)")
    A("v_perm_b32 v92, v84, v84, s34")
    A("v_alignbit_b32 v93, v85, v84, 16")
    A("v_perm_b32 v94, v85, v85, s34")
    A("v_alignbit_b32 v95, v86, v85, 16")
    A(f"ds_write_b128 v83, v[92:95] offset:{LIN+512}")
    A("s_waitcnt lgkmcnt(3)")
    A("v_perm_b32 v96, v87, v87, s34")
    A("v_mov_b32 v97, v87")
    A("v_perm_b32 v98, v87, v87, s35")
    A("v_perm_b32 v99, v88, v88, s34")
    A(f"ds_write_b128 v83, v[96:99] offset:{LIN+1024}")
    A("s_waitcnt lgkmcnt(2)")
    A("v_perm_b32 v100, v89, v89, s34")
    A("v_perm_b32 v101, v89, v89, s34")
    A("v_mov_b32 v102, v89")
    A("v_perm_b32 v103, v89, v89, s35")
    A("v_perm_b32 v104, v89, v89, s35")
    A("v_perm_b32 v105, v89, v89, s35")
    A("v_perm_b32 v106, v90, v90, s34")
    A("v_perm_b32 v107, v90, v90, s34")
    A(f"ds_write_b128 v79, v[100:103] offset:{LIN+2048}")
    A(f"ds_write_b128 v79, v[104:107] offset:{LIN+2048+16}")
    A("s_waitcnt lgkmcnt(0)")
    if dbgK:
        for j in range(4):
            A(f"ds_read_b128 v[{100+4*j}:{103+4*j}], v83 offset:{LIN+1024*j}")
        A("s_lshl_b32 s38, s26, 12")
        A("v_lshl_add_u32 v99, v1, 4, s38")
        A("s_waitcnt lgkmcnt(0)")
        for j in range(4):
            A(f"global_store_dwordx4 v99, v[{100+4*j}:{103+4*j}], s[42:43] offset:{1024*j}")
        A("s_waitcnt vmcnt(0)")
    O = 100
    for j in range(8):
        b = O + 10*j
        A(f"ds_read_b64 v[{b+8}:{b+9}], v82 offset:{LIN-8+512*j}")
        A(f"ds_read_b64 v[{b}:{b+1}], v82 offset:{LIN+512*j}")
    for j in range(8):
        b = O + 10*j
        A(f"s_waitcnt lgkmcnt({14-2*j})")
        A(f"v_alignbit_b32 v{b+2}, v{b}, v{b+9}, 16")
        A(f"v_alignbit_b32 v{b+3}, v{b+1}, v{b}, 16")
        A(f"v_mov_b32 v{b+4}, v{b+9}")
        A(f"v_mov_b32 v{b+5}, v{b}")
        A(f"v_alignbit_b32 v{b+6}, v{b+9}, v{b+8}, 16")
        A(f"v_alignbit_b32 v{b+7}, v{b}, v{b+9}, 16")
    for j in range(8):
        b = O + 10*j
        A(f"ds_write_b128 v79, v[{b}:{b+3}] offset:{2048*j}")
        A(f"ds_write_b128 v79, v[{b+4}:{b+7}] offset:{2048*j+16}")
    A("v_and_b32 v53, 3, v1")
    A("v_bfe_u32 v54, v1, 2, 2")
    A("v_lshlrev_b32 v52, 5, v53")
    A("v_lshl_add_u32 v52, v54, 3, v52")
    A("v_lshlrev_b32 v55, 6, v36")
    A("v_sub_u32 v52, v52, v55")
    A("v_add_u32 v52, s31, v52")
    A("v_add_u32 v52, 96, v52")
    A("v_lshlrev_b32 v56, 5, v35")
    A("v_lshl_add_u32 v56, v36, 4, v56")
    A("v_add_u32 v57, s27, v56")
    A(f"v_add_u32 v57, {UOFF+32}, v57")
    for tau in range(8):
        A(f"v_cmp_le_u32_e64 s[{44+2*tau}:{45+2*tau}], {('0x%x' % (64*tau+32)) if 64*tau+32 > 64 else 64*tau+32}, v56" if 64*tau+32 <= 64 else
          f"v_cmp_le_u32 vcc, 0x{64*tau+32:x}, v56\n s_mov_b64 s[{44+2*tau}:{45+2*tau}], vcc")
    A("v_lshlrev_b32 v58, 3, v36")
    A("v_sub_u32 v58, v35, v58")
    A("v_cmp_le_i32_e64 s[60:61], -16, v58")
    A("v_cmp_le_i32_e64 s[62:63], -12, v58")
    A("v_mul_u32_u24 v59, %d, v53" % WSZ)
    A("v_lshrrev_b32 v60, 2, v1")
    A("v_lshl_add_u32 v59, v60, 4, v59")
    A("s_lshl_b32 s38, s24, 10")
    A("v_add_u32 v59, s38, v59")
    A("s_waitcnt vmcnt(0)")
    for j in range(4):
        A(f"ds_write_b128 v59, v[{8+4*j}:{11+4*j}] offset:{UOFF+256*j}")
    A("s_waitcnt lgkmcnt(0)")
    stamp()
    A("s_barrier")
    stamp()
    ACC = 64
    SET = [96, 160]
    def loads(tau):
        s = SET[tau & 1]
        L = []
        for x in range(8):
            ar = s + 4*x
            L.append(f"ds_read_b64_tr_b16 v[{ar}:{ar+1}], v52 offset:{2048*x+256*tau+32}")
            L.append(f"ds_read_b64_tr_b16 v[{ar+2}:{ar+3}], v52 offset:{2048*x+256*tau}")
            br = s + 32 + 4*x
            if x == 0:
                L.append("\n".join([f"v_mov_b32 v{br+i}, 0" for i in range(4)] +
                    [f"v_subrev_u32 v59, {64*tau+64 if 64*tau+64<=64 else hex(64*tau+64)}, v57",
                     f"s_mov_b64 exec, s[{44+2*tau}:{45+2*tau}]",
                     f"ds_read_b128 v[{br}:{br+3}], v59",
                     "s_mov_b64 exec, -1"]))
            else:
                L.append(f"ds_read_b128 v[{br}:{br+3}], v57 offset:{512*(x-1)+64*(7-tau)}")
        return L
    for l in loads(0): A(l)
    first = [True]*8
    for tau in range(8):
        s = SET[tau & 1]
        A("s_waitcnt lgkmcnt(0)")
        if tau == 0:
            A(f"v_cndmask_b32_e64 v{s}, 0, v{s}, s[60:61]")
            A(f"v_cndmask_b32_e64 v{s+1}, 0, v{s+1}, s[60:61]")
            A(f"v_cndmask_b32_e64 v{s+2}, 0, v{s+2}, s[62:63]")
            A(f"v_cndmask_b32_e64 v{s+3}, 0, v{s+3}, s[62:63]")
            A("s_nop 1")
        nxt = loads(tau+1) if tau < 7 else []
        pairs = [(x, c) for x in range(8) for c in range(8-x)]
        for idx, (x, c) in enumerate(pairs):
            i = x + c
            acc = f"v[{ACC+4*i}:{ACC+4*i+3}]"
            cin = "0" if first[i] else acc
            first[i] = False
            A(f"v_mfma_f32_16x16x32_bf16 {acc}, v[{s+4*x}:{s+4*x+3}], v[{s+32+4*c}:{s+32+4*c+3}], {cin}")
            if idx < len(nxt):
                A(nxt[idx])
    stamp()
    A("s_lshl_b32 s38, s24, 6")
    A("s_add_u32 s38, s38, s31")
    A("v_lshlrev_b32 v52, 5, v35")
    A("v_lshl_add_u32 v52, v36, 3, v52")
    A("v_add_u32 v52, s38, v52")
    A("v_mul_u32_u24 v53, %d, v54" % (WSZ+64))
    A("v_and_b32 v55, 3, v1")
    A("v_lshl_add_u32 v53, v55, 3, v53")
    A("v_lshl_add_u32 v53, v36, 5, v53")
    A("s_lshl_b32 s39, s24, 10")
    A("v_add_u32 v53, s39, v53")
    A("s_lshl_b32 s39, s24, 20")
    A("s_add_u32 s39, s39, s30")
    A("s_add_u32 s39, s39, 1024")
    A("v_lshlrev_b32 v55, 11, v1")
    A("v_add_u32 v55, s39, v55")
    A("s_nop 4")
    for i in range(8):
        b = ACC + 4*i
        A(f"v_cvt_pk_bf16_f32 v{96+2*i}, v{b}, v{b+1}")
        A(f"v_cvt_pk_bf16_f32 v{97+2*i}, v{b+2}, v{b+3}")
        A(f"ds_write_b64 v52, v[{96+2*i}:{97+2*i}] offset:{512*i}")
    A("s_waitcnt lgkmcnt(0)")
    A("s_barrier")
    for j in range(8):
        A(f"ds_read_b64_tr_b16 v[{112+2*j}:{113+2*j}], v53 offset:{KOFF+128*j}")
    for j in range(8):
        A(f"s_waitcnt lgkmcnt({7-j})")
        A(f"global_store_dwordx2 v55, v[{112+2*j}:{113+2*j}], s[22:23]")
        if j < 7:
            A("v_add_u32 v55, 0x20000, v55")
    if stamps:
        stamp()
        A("s_waitcnt vmcnt(0)")
        stamp()
        n = nst[0]
        A("s_lshl_b32 s38, s2, 2")
        A("s_add_u32 s38, s38, s24")
        A("s_lshl_b32 s38, s38, 7")
        A(f"s_add_u32 s38, s38, {stamps}")
        A("v_mov_b32 v2, s38")
        for i in range(n):
            A(f"v_mov_b32 v4, s{64+2*i}")
            A(f"v_mov_b32 v5, s{65+2*i}")
            A(f"global_store_dwordx2 v2, v[4:5], s[42:43] offset:{8*i}")
        A("s_waitcnt vmcnt(0)")
    A("s_endpgm")

if __name__ == "__main__":
    import sys
    dbg = "--dbg" in sys.argv
    a = Asm()
    a("s_cmp_ge_u32 s2, 128")
    a("s_cbranch_scc1 .Lexit")
    emit_B(a, dbgK=dbg, stamps=(0x400000 if "--st" in sys.argv else None))
    a.label(".Lexit")
    a("s_endpgm")
    k = kernel_text(NAME + "_kernel", a.text(), vgpr=256, sgpr=96)
    open("tB.s", "w").write(file_text([(None, 128, 256, 81920)], [k]))
```

```python
import sys
from asmlib import *
import genA2, genB2
def build(path, stamps=False, **kw):
    a = Asm()
    a("s_cmp_ge_u32 s2, 256")
    a("s_cbranch_scc1 .LS")
    genA2.emit_A(a, stamps=(0x600000 if stamps else None), **kw.get("A", {}))
    a.label(".LS")
    a("s_cmp_ge_u32 s2, 384")
    a("s_cbranch_scc1 .LB")
    a("s_sub_u32 s2, s2, 256")
    genA2.emit_S(a)
    a.label(".LB")
    a("s_cmp_ge_u32 s2, 512")
    a("s_cbranch_scc1 .Lexit")
    a("s_sub_u32 s2, s2, 384")
    if kw.get("noB"): a("s_endpgm")
    genB2.emit_B(a, stamps=(0x680000 if stamps else None), **kw.get("B", {}))
    a.label(".Lexit")
    a("s_endpgm")
    k = kernel_text(NAME + "_kernel", a.text(), vgpr=256, sgpr=102)
    hdr = "".join(l for l in open("cdna_kernels/" + NAME + ".s.ref") if l.startswith(";") and "@launch" not in l)
    open(path, "w").write(file_text([(None, 512, 256, 81920)], [k], header=hdr))
if __name__ == "__main__":
    kw = dict(A=dict(prio=3))
    build("k2.s", **kw)
    build("tF2.s", stamps=True, **kw)
    build("tF2n.s", stamps=True, noB=True, **kw)
```

```python
import struct, math
from asmlib import *

def f32bits(x): return struct.unpack("<I", struct.pack("<f", x))[0]
LOG2E = f32bits(math.log2(math.e))

from genB7 import KVOFF, OOFF, F1OFF, F2OFF, F3OFF
S0, S1, S2 = 32768, 49152, 65536
PVB = 0
PVS = 224
KVI = S2
KVS = 80

class VM:
    def __init__(self, A): self.A = A; self.ops = []
    def issue(self, tag, ins):
        self.A(ins); self.ops.append(tag)
    def cnt(self, tag):
        idx = max(i for i, t in enumerate(self.ops) if t == tag)
        n = len(self.ops) - 1 - idx
        assert n <= 63
        return n
    def wait(self, tag, extra=""):
        self.A(f"s_waitcnt vmcnt({self.cnt(tag)}){extra}")
    def drain(self):
        self.A("s_waitcnt vmcnt(0)"); self.ops = []

def softmax_stream(P, EN, OUT, T, sL, pk=False):
    mx, mn, t0, t1, s0, s1 = T
    H = []
    H.append(f"v_max3_f32 v{mx}, v{P}, v{P+1}, v{P+2}")
    H.append(f"v_min3_f32 v{mn}, v{P}, v{P+1}, v{P+2}")
    H.append(f"v_max3_f32 v{t0}, v{P+3}, v{P+4}, v{P+5}")
    H.append(f"v_min3_f32 v{t1}, v{P+3}, v{P+4}, v{P+5}")
    for i in (6, 10):
        H.append(f"v_max3_f32 v{mx}, v{mx}, v{P+i}, v{P+i+1}")
        H.append(f"v_min3_f32 v{mn}, v{mn}, v{P+i}, v{P+i+1}")
        H.append(f"v_max3_f32 v{t0}, v{t0}, v{P+i+2}, v{P+i+3}")
        H.append(f"v_min3_f32 v{t1}, v{t1}, v{P+i+2}, v{P+i+3}")
    H.append(f"v_max3_f32 v{mx}, v{mx}, v{P+14}, v{P+15}")
    H.append(f"v_min3_f32 v{mn}, v{mn}, v{P+14}, v{P+15}")
    H.append(f"v_max_f32 v{mx}, v{mx}, v{t0}")
    H.append(f"v_min_f32 v{mn}, v{mn}, v{t1}")
    H.append(f"v_mul_f32_e64 v{mx}, -v{mx}, {sL}")
    H.append(f"v_mul_f32 v{mn}, {sL}, v{mn}")
    B = []
    for i in range(16):
        B.append(f"v_fma_f32 v{EN+i}, -v{P+i}, {sL}, v{mn}")
        B.append(f"v_fma_f32 v{P+i}, v{P+i}, {sL}, v{mx}")
        if i >= 1:
            B.append(f"v_exp_f32 v{EN+i-1}, v{EN+i-1}")
            B.append(f"v_exp_f32 v{P+i-1}, v{P+i-1}")
        if i >= 3:
            j = i - 2
            if j == 1:
                B.append(f"v_add_f32 v{s0}, v{P}, v{P+1}")
                B.append(f"v_add_f32 v{s1}, v{EN}, v{EN+1}")
            else:
                B.append(f"v_add_f32 v{s0}, v{s0}, v{P+j}")
                B.append(f"v_add_f32 v{s1}, v{s1}, v{EN+j}")
    B.append(f"v_exp_f32 v{EN+15}, v{EN+15}")
    B.append(f"v_exp_f32 v{P+15}, v{P+15}")
    B.append(f"v_add_f32 v{s0}, v{s0}, v{P+14}")
    B.append(f"v_add_f32 v{s1}, v{s1}, v{EN+14}")
    B.append(f"v_add_f32 v{s1}, v{s1}, v{EN+15}")
    B.append(f"v_add_f32 v{s0}, v{s0}, v{P+15}")
    B.append(f"v_rcp_f32 v{s1}, v{s1}")
    B.append(f"v_rcp_f32 v{s0}, v{s0}")
    Tl = []
    for h, s, E in ((1, s1, EN), (0, s0, P)):
        for i in range(0, 16, 2):
            a, b = E+i, E+i+1
            Tl.append(f"v_mul_f32 v{a}, v{a}, v{s}")
            Tl.append(f"v_mul_f32 v{b}, v{b}, v{s}")
            Tl.append(f"v_cvt_pk_bf16_f32 v{OUT[8*h+i//2]}, v{a}, v{b}")
    return H, B, Tl

def cost(ins):
    return 8 if ins.startswith(("v_exp", "v_rcp")) else 4

def interleave(A, valu, items, budget):
    vi = 0
    for it in items:
        for l in it: A(l)
        c = 0
        while vi < len(valu) and c + cost(valu[vi]) <= budget:
            A(valu[vi]); c += cost(valu[vi]); vi += 1
    return valu[vi:]

def emit_A(a, stamps=None, prio=None, bud=16, clr_i=4, force_slow=False, outmod='', kap=0, skip=(2, 5), tstr=17408, D=7, nonce=True, sp1=40, sp2=4, sp3=12, wva5=4, h1sp=3, vb=13, pf=0, fsti=None, wo2n=8, h1w=True):
    A = a
    nst = [0]
    def stamp(idn=None):
        if stamps and idn not in skip:
            i = nst[0]; nst[0] += 1
            A(f"s_memtime s[{streg(i)}:{streg(i)+1}]")
    def streg(i): return 80+2*i if i < 10 else 20+2*(i-10)
    stamp(0)
    if prio is not None: A(f"s_setprio {prio}")
    A("s_load_dwordx8 s[4:11], s[0:1], 0")
    A("s_load_dwordx2 s[12:13], s[0:1], 104")
    A("s_load_dwordx4 s[16:19], s[0:1], 112")
    A("s_memrealtime s[70:71]")
    A("v_and_b32 v1, 63, v0")
    A("v_lshrrev_b32 v2, 6, v0")
    A("s_and_b32 s40, s2, 7")
    A("s_lshr_b32 s41, s2, 3")
    A("v_readfirstlane_b32 s36, v2")
    A("s_getreg_b32 s3, hwreg(HW_REG_XCC_ID, 0, 4)")
    A("s_and_b32 s42, s41, 1")
    A("s_lshl_b32 s37, s40, 1")
    A("s_add_u32 s37, s37, s42")
    A("s_lshr_b32 s38, s41, 1")
    if kap == 0:
        A("s_lshl_b32 s39, s42, 2")
        A("s_add_u32 s39, s39, s38")
    elif kap == 1:
        A("s_lshr_b32 s39, s41, 2")
    else:
        A("s_mov_b32 s39, s41")
    A("s_and_b32 s42, s41, 3")
    A("s_lshl_b32 s14, s40, 2")
    A("s_add_u32 s14, s14, s42")
    A("s_lshr_b32 s15, s41, 2")
    A("s_lshl_b32 s3, s3, 27")
    A("v_lshrrev_b32 v21, 3, v1")
    A("v_lshrrev_b32 v22, 4, v1")
    A("v_and_b32 v23, 3, v1")
    A("v_bfe_u32 v24, v1, 2, 2")
    A("v_lshrrev_b32 v25, 5, v1")
    A("v_and_b32 v26, 31, v1")
    A("v_and_b32 v27, 15, v1")
    A("s_lshl_b32 s40, s38, 10")
    A("v_lshl_add_u32 v29, v1, 4, s40")
    A("s_mul_i32 s40, s36, %d" % (16*3072))
    A("s_lshl_b32 s41, s38, 6")
    A("s_add_u32 s40, s40, s41")
    A("v_lshrrev_b32 v28, 2, v1")
    A("v_mul_u32_u24 v4, 3072, v28")
    A("v_lshl_add_u32 v4, v23, 4, v4")
    A("v_add_u32 v4, s40, v4")
    A("s_lshl_b32 s40, s37, 17")
    A("s_lshl_b32 s41, s36, 15")
    A("s_add_u32 s40, s40, s41")
    A("v_and_b32 v28, 7, v1")
    A("v_xor_b32 v28, v28, v22")
    A("v_lshlrev_b32 v2, 10, v21")
    A("v_lshl_add_u32 v2, v28, 4, v2")
    A("v_add_u32 v2, s40, v2")
    A("v_xor_b32 v3, 64, v2")
    A("s_lshl_b32 s44, s36, 12")
    A("s_lshl_b32 s45, s36, 10")
    for i in range(8):
        A(f"s_add_u32 s40, s39, {i}")
        A("s_and_b32 s40, s40, 7")
        A(f"s_lshl_b32 s{52+i}, s40, 7")
        A(f"s_mul_i32 s{60+i}, s40, {64*3072}")
    A("s_waitcnt lgkmcnt(0)")
    for (d, p, n) in ((20, 4, 2048*1024), (24, 6, 512*3072), (28, 10, 512*1024), (32, 8, 32*512)):
        A(f"s_mov_b32 s{d}, s{p}")
        A(f"s_mov_b32 s{d+1}, s{p+1}")
        A(f"s_mov_b32 s{d+2}, {n}")
        A(f"s_mov_b32 s{d+3}, 0x00020000")
    lnn = a.newlabel("Anon")
    A("s_or_b32 s40, s2, s36")
    A(f"s_cbranch_scc1 {lnn}" if nonce else f"s_branch {lnn}")
    A("s_or_b32 s70, s70, 1")
    A("s_bitset1_b32 s71, 31")
    A("v_mov_b32 v125, 0")
    A("v_mov_b32 v126, s70")
    A("v_mov_b32 v127, s71")
    A("s_mov_b64 exec, 1")
    A("global_store_dwordx2 v125, v[126:127], s[16:17] sc1")
    A("s_mov_b64 exec, -1")
    a.label(lnn)
    vm = VM(A)
    if pf:
        lpf = a.newlabel("Apf")
        A(f"s_cmp_ge_u32 s2, {pf}")
        A(f"s_cbranch_scc1 {lpf}")
        A("s_getpc_b64 s[72:73]")
        a.label(".Lpc0")
        A("v_lshlrev_b32 v125, 7, v0")
        A("v_min_u32 v125, .Lexit-.Lpc0, v125")
        A("global_load_dword v126, v125, s[72:73]")
        a.label(lpf)
    A(f"s_add_u32 m0, s44, {S2}")
    vm.issue("wphi", "buffer_load_dwordx4 v29, s[32:35], 0 offen lds")
    X = 128
    SL = [S0, S1, S2]
    def xdma(i):
        for j in range(4):
            A(f"s_add_u32 m0, s44, {SL[i%3]+1024*j}")
            if j: A(f"s_add_u32 s{52+i}, s{52+i}, 8192")
            vm.issue(f"x{i}", f"buffer_load_dwordx4 v{2+(j&1)}, s[20:23], s{52+i} offen lds")
    def wdma(tag, i, mat, m0base, m0off):
        A(f"s_add_u32 m0, {m0base}, {m0off}")
        A(f"s_add_u32 s41, s{60+i}, {1024*mat}")
        vm.issue(tag, "buffer_load_dwordx4 v4, s[24:27], s41 offen lds")
    class L:
        def __init__(s_, f): s_.f = f
    def emit(x):
        if isinstance(x, L): x.f()
        else: A(x)
    def sprinkle(st, loads, first, sp):
        out = []; k = 0
        for n, l in enumerate(st):
            if k < len(loads) and n >= first + k*sp: out.append(loads[k]); k += 1
            out.append(l)
        return out + loads[k:]
    for i in range(2): wdma("wk", i, 1, "s45", 4096*i)
    xdma(0)
    for i in range(2, 8): wdma("wk", i, 1, "s45", 4096*i)
    xdma(1)
    A("v_bfe_u32 v28, v26, 1, 3")
    A("v_xor_b32 v28, v28, v25")
    A("v_lshlrev_b32 v6, 7, v26")
    A("v_lshl_add_u32 v6, v28, 4, v6")
    A(f"s_add_u32 s40, s44, {S0}")
    A("v_add_u32 v6, s40, v6")
    for t in range(1, 4): A(f"v_xor_b32 v{6+t}, {32*t}, v6")
    A("v_and_b32 v28, 1, v23")
    A("v_lshlrev_b32 v30, 5, v28")
    A("v_and_b32 v31, 1, v22")
    A("v_lshl_add_u32 v30, v31, 4, v30")
    A("v_lshrrev_b32 v5, 1, v23")
    A("v_lshl_add_u32 v30, v5, 3, v30")
    A("v_lshlrev_b32 v29, 9, v28")
    A("v_lshl_add_u32 v29, v24, 5, v29")
    A("v_lshl_add_u32 v29, v31, 4, v29")
    A("v_lshl_add_u32 v29, v5, 3, v29")
    A(f"s_add_u32 s40, s44, {S2}")
    A("v_add_u32 v29, s40, v29")
    A("v_lshl_add_u32 v31, v25, 3, v24")
    A("v_lshl_add_u32 v10, v31, 6, v30")
    A(f"v_add_u32 v11, {S0}, v10")
    A("v_bfe_u32 v28, v1, 2, 1")
    A("v_cmp_eq_u32_e64 s[46:47], v28, v25")
    WP = 96
    vm.wait("wphi")
    for t in range(2):
        for sec in range(2):
            A(f"ds_read_b64_tr_b16 v[{WP+4*t+2*sec}:{WP+4*t+2*sec+1}], v29 offset:{256*t+128*sec}")
    A("s_mul_i32 s40, s36, %d" % (32*PVS))
    A(f"v_mul_u32_u24 v16, {PVS}, v26")
    A("v_add_u32 v16, s40, v16")
    A("v_lshl_add_u32 v15, v25, 6, v16")
    A("v_lshl_add_u32 v16, v25, 5, v16")
    A("v_add_u32 v16, 128, v16")
    A(f"s_mov_b32 s48, 0x{LOG2E:08x}")
    A("s_waitcnt lgkmcnt(0)")
    xdma(2)
    for q in range(8):
        A(f"v_cndmask_b32_e64 v{WP+q}, 0, v{WP+q}, s[46:47]")
    A("s_lshl_b32 s40, s15, 7")
    A("v_and_b32 v28, 1, v22")
    A("v_and_b32 v29, 7, v1")
    A("v_xor_b32 v28, v28, v29")
    A("v_lshlrev_b32 v12, 10, v21")
    A("v_lshl_add_u32 v12, v28, 4, v12")
    A("v_add_u32 v12, s40, v12")
    A("v_xor_b32 v13, 64, v12")
    A(f"s_mul_i32 s40, s37, {8*tstr}")
    A(f"s_mul_i32 s41, s36, {2*tstr}")
    A("s_add_u32 s40, s40, s41")
    A("s_lshl_b32 s41, s38, 10")
    A("s_add_u32 s40, s40, s41")
    A(f"s_add_u32 s40, s40, {OOFF}")
    A("v_and_b32 v14, 1, v22")
    A(f"v_mul_u32_u24 v14, {tstr}, v14")
    A("v_lshl_add_u32 v14, v25, 9, v14")
    A("v_lshl_add_u32 v14, v27, 4, v14")
    A("v_add_u32 v14, s40, v14")
    A("v_lshl_add_u32 v28, v22, 2, v24")
    A(f"v_mul_u32_u24 v17, {PVS}, v28")
    A("v_lshl_add_u32 v17, v23, 3, v17")
    A("s_lshr_b32 s40, s36, 1")
    A("s_lshl_b32 s41, s40, 5")
    A(f"s_add_u32 s41, s41, {PVB+128}")
    A("v_add_u32 v18, s41, v17")
    A("s_lshl_b32 s41, s36, 5")
    A("v_add_u32 v17, s41, v17")
    A("s_and_b32 s41, s36, 1")
    A("s_lshl_b32 s41, s41, 1")
    A("s_lshl_b32 s42, s38, 2")
    A("s_add_u32 s41, s41, s42")
    A("s_mul_i32 s41, s41, 12288")
    A("s_lshl_b32 s42, s37, 8")
    A("s_add_u32 s41, s41, s42")
    A(f"s_add_u32 s41, s41, {KVOFF}")
    A("s_lshl_b32 s42, s40, 12")
    A("s_add_u32 s42, s42, s41")
    A("s_add_u32 s41, s41, 8192")
    A("v_mul_u32_u24 v19, 12288, v25")
    A("v_lshl_add_u32 v19, v27, 4, v19")
    A("v_and_b32 v28, 1, v22")
    A("v_lshl_add_u32 v19, v28, 3, v19")
    A("v_add_u32 v20, s41, v19")
    A("v_add_u32 v19, s42, v19")
    A("v_and_b32 v28, 1, v1")
    A("v_cmp_eq_u32_e64 s[50:51], s40, v28")
    A("s_lshl_b32 s40, s37, 2")
    A("s_add_u32 s40, s40, s36")
    A("s_lshl_b32 s41, s40, 3")
    A("s_lshl_b32 s42, s38, 9")
    A("s_add_u32 s41, s41, s42")
    A(f"s_add_u32 s41, s41, {F1OFF}")
    A("s_lshl_b32 s40, s40, 7")
    A("s_lshl_b32 s42, s38, 3")
    A("s_add_u32 s40, s40, s42")
    A(f"s_add_u32 s8, s40, {F2OFF}")
    A("s_and_b32 s40, s2, 7")
    A("s_lshl_b32 s40, s40, 10")
    A("s_lshl_b32 s42, s36, 8")
    A("s_add_u32 s40, s40, s42")
    A(f"s_add_u32 s9, s40, {F3OFF}")
    A("s_and_b32 s42, s2, 0xf8")
    A("s_add_u32 s40, s9, s42")
    A("v_mov_b32 v5, s41")
    A("v_writelane_b32 v5, s40, 1")
    A("v_mov_b32 v21, 0")
    for q in range(4): A(f"v_mov_b32 v{120+q}, -1")
    AK, AV, EN, WF, WQH = 32, 48, 64, 80, 104
    T = [120, 121, 122, 123, 124, 125]
    vm.wait("wk")
    A("s_barrier")
    stamp(1)
    for i in range(8):
        wb = EN if (i & 1) else WF
        for t in range(4):
            for sec in range(2):
                b = wb + 4*t + 2*sec
                A(f"ds_read_b64_tr_b16 v[{b}:{b+1}], v10 offset:{4096*i+1024*t+256*sec}")
        vm.wait(f"x{i}")
        if i in (0, 7): stamp(2)
        for t in range(4):
            A(f"ds_read_b128 v[{X+16*i+4*t}:{X+16*i+4*t+3}], v{6+t} offset:{SL[i%3]-S0}")
        def mf():
            for t in range(4):
                b = wb + 4*t
                A(f"s_waitcnt lgkmcnt({3-t})")
                cin = "0" if (i == 0 and t == 0) else f"v[{AK}:{AK+15}]"
                A(f"v_mfma_f32_32x32x16_bf16 v[{AK}:{AK+15}], v[{b}:{b+3}], v[{X+16*i+4*t}:{X+16*i+4*t+3}], {cin}")
        mf()
        if i <= 4: xdma(i+3)
        if i == clr_i:
            vm.issue("clr", "global_store_dwordx2 v19, v[120:121], s[18:19] sc1")
            A("s_mov_b64 exec, s[50:51]")
            vm.issue("clr", "global_store_dwordx2 v20, v[120:121], s[18:19] sc1")
            A("s_mov_b64 exec, -1")
            vm.issue("clr", "global_load_dwordx2 v[28:29], v21, s[16:17]")
        if i <= 4: pass
        elif i == 5:
            for q in range(wva5): wdma("wva", q, 2, "s44", S2+1024*q)
        elif i == 6:
            for q in range(wva5, 4): wdma("wva", q, 2, "s44", S2+1024*q)
    for q in range(8):
        A(f"v_cvt_pk_bf16_f32 v{120+q}, v{AK+2*q}, v{AK+2*q+1}")
    A(f"v_mfma_f32_32x32x16_bf16 v[{AK}:{AK+15}], v[{WP}:{WP+3}], v[120:123], 0")
    A(f"v_mfma_f32_32x32x16_bf16 v[{AK}:{AK+15}], v[{WP+4}:{WP+7}], v[124:127], v[{AK}:{AK+15}]")
    wdma("wvb", 4, 2, "s44", S0)
    stamp(3)
    OUT = [AK+q for q in range(8)] + [EN+q for q in range(8)]
    H, B, Tl = softmax_stream(AK, EN, OUT, T, "s48")
    lvb = [L(lambda q=q: wdma("wvb", 4+q, 2, "s44", S0+1024*q)) for q in range(1, 4)]
    lqa = [L(lambda q=q: wdma("wqa", q, 0, "s44", S1+1024*q)) for q in range(4)]
    lqb = [L(lambda q=q: vm.issue("wqb", f"buffer_load_dwordx4 v[{WQH+4*q}:{WQH+4*q+3}], v4, s[24:27], s{64+q} offen")) for q in range(4)]
    for l in sprinkle(H + B[:sp1], lvb, 14, sp3): emit(l)
    B = B[sp1:]
    def vaddr(i, t, sec):
        base = (S2 if i < 4 else S0) - S0
        return base + 4096*t + 1024*(i & 3) + 256*sec
    def vreads(n):
        i, t = n >> 2, n & 3
        b = WF + 4*(n & 3)
        return [f"ds_read_b64_tr_b16 v[{b+2*sec}:{b+2*sec+1}], v11 offset:{vaddr(i, t, sec)}" for sec in range(2)]
    def vitems(lo, hi):
        items = []
        pre = vreads(lo) + vreads(lo+1) + vreads(lo+2)
        items.append(pre)
        for n in range(lo, hi):
            i, t = n >> 2, n & 3
            b = WF + 4*(n & 3)
            it = []
            left = min(hi-1, n+2) - n
            it.append(f"s_waitcnt lgkmcnt({2*left})")
            cin = "0" if n == 0 else f"v[{AV}:{AV+15}]"
            it.append(f"v_mfma_f32_32x32x16_bf16 v[{AV}:{AV+15}], v[{b}:{b+3}], v[{X+16*i+4*t}:{X+16*i+4*t+3}], {cin}")
            if n + 3 < hi: it += vreads(n+3)
            items.append(it)
        return items
    vm.wait("wva")
    A("v_readfirstlane_b32 s4, v28")
    A("v_readfirstlane_b32 s5, v29")
    A("s_mov_b32 s77, 0x40000")
    ln = a.newlabel("Anonce"); lnd = a.newlabel("Anonced")
    a.label(ln)
    A("s_min_u32 s40, s4, s5")
    A("s_cmp_lg_u32 s40, 0")
    A(f"s_cbranch_scc1 {lnd}")
    A("s_sub_u32 s77, s77, 1")
    A(f"s_cbranch_scc1 {lnd}")
    A("global_load_dwordx2 v[28:29], v21, s[16:17] sc1")
    A("s_waitcnt vmcnt(0)")
    A("v_readfirstlane_b32 s4, v28")
    A("v_readfirstlane_b32 s5, v29")
    A(f"s_branch {ln}")
    a.label(lnd)
    A("s_or_b32 s7, s5, s3")
    A("s_mov_b32 s6, s4")
    A("v_writelane_b32 v29, s7, 1")
    def fst():
        A("s_mov_b64 exec, 3")
        vm.issue("fst", "global_store_dwordx2 v5, v[28:29], s[18:19] sc1")
        A("s_mov_b64 exec, -1")
    if fsti is None: fst()
    A("s_barrier")
    stamp(4)
    def addl(items, loads, first, sp):
        for k, l in enumerate(loads): items[first + k*sp].append(l)
        return items
    its = vitems(0, 32)
    its[vb] += [L(lambda: vm.wait("wvb")), "s_barrier"]
    assert vb <= 13
    addl(its, lqa + lqb, 1, sp2)
    if fsti is not None: its[fsti].append(L(fst))
    rest = interleave(emit, B + Tl, its, bud)
    for l in rest: A(l)
    for q in range(2):
        A(f"ds_write_b128 v15, v[{EN+4*q}:{EN+4*q+3}] offset:{32+16*q}")
    for q in range(2):
        A(f"ds_write_b128 v15, v[{AK+4*q}:{AK+4*q+3}] offset:{16*q}")
    for q in range(8):
        A(f"v_cvt_pk_bf16_f32 v{WF+q}, v{AV+2*q}, v{AV+2*q+1}")
        if q == 3: A(f"ds_write_b128 v16, v[{WF}:{WF+3}]")
    A(f"ds_write_b128 v16, v[{WF+4}:{WF+7}] offset:16")
    for q in range(4): A(f"v_mov_b32 v{120+q}, 0x3f803f80")
    stamp(5)
    A("s_lshl_b32 s40, s38, 9")
    A(f"s_add_u32 s40, s40, {F1OFF}")
    A("v_lshl_add_u32 v5, v1, 3, s40")
    A("v_lshl_add_u32 v8, v26, 3, s9")
    vm.wait("wqa", " lgkmcnt(0)")
    A("s_barrier")
    stamp(6)
    WB = 64
    for u in range(4):
        for op, vr in ((0, 17), (1, 18)):
            for sec in range(2):
                b = WB + 8*u + 4*op + 2*sec
                A(f"ds_read_b64_tr_b16 v[{b}:{b+1}], v{vr} offset:{32*PVS*u+16*PVS*sec}")
    for u in range(4):
        b = WB + 8*u
        A(f"s_waitcnt lgkmcnt({14-4*u})")
        A(f"v_mfma_f32_16x16x32_bf16 v[{AK+4}:{AK+7}], v[{b}:{b+3}], v[120:123], {'0' if u == 0 else f'v[{AK+4}:{AK+7}]'}")
        A(f"s_waitcnt lgkmcnt({12-4*u})")
        A(f"v_mfma_f32_16x16x32_bf16 v[{AK}:{AK+3}], v[{b}:{b+3}], v[{b+4}:{b+7}], {'0' if u == 0 else f'v[{AK}:{AK+3}]'}")
    A(f"s_add_u32 s40, s44, {S2}")
    A("v_lshl_add_u32 v30, v1, 4, s40")
    A(f"v_cvt_pk_bf16_f32 v{AV+2}, v{AK+4}, v{AK+5}")
    A(f"v_cvt_pk_bf16_f32 v{AV+3}, v{AK+6}, v{AK+7}")
    A(f"v_cvt_pk_bf16_f32 v{AV}, v{AK}, v{AK+1}")
    A(f"v_cvt_pk_bf16_f32 v{AV+1}, v{AK+2}, v{AK+3}")
    for q in (2, 3, 0, 1): A(f"v_min_u32 v{AV+q}, -2, v{AV+q}")
    vm.issue("pub", f"global_store_dwordx2 v19, v[{AV}:{AV+1}], s[18:19] sc1")
    A("s_mov_b64 exec, s[50:51]")
    vm.issue("pub", f"global_store_dwordx2 v20, v[{AV+2}:{AV+3}], s[18:19] sc1")
    A("s_mov_b64 exec, -1")
    vm.issue("flag", "global_load_dwordx2 v[28:29], v5, s[18:19] sc1")
    stamp(7)
    vm.wait("wqb")
    for j in range(4):
        A(f"ds_write_b128 v30, v[{WQH+4*j}:{WQH+4*j+3}] offset:{1024*j}")
    def wodma(g0, n, tag):
        def one(q):
            if q == 0:
                A(f"s_mul_i32 s72, s36, {n}")
                A(f"s_add_u32 s72, s72, {g0}")
                A("s_lshl_b32 s73, s72, 13")
                A("s_lshl_b32 s72, s72, 10")
            A(f"s_add_u32 m0, s72, {1024*q}")
            vm.issue(tag, f"buffer_load_dwordx4 v{12+(q&1)}, s[28:31], s73 offen lds")
            if q < n-1: A("s_add_u32 s73, s73, 8192")
        return [L(lambda q=q: one(q)) for q in range(n)]
    def qreads(i):
        L = []
        base = (S1 if i < 4 else S2) - S0
        for t in range(4):
            for sec in range(2):
                b = WB + 16*(i & 1) + 4*t + 2*sec
                L.append(f"ds_read_b64_tr_b16 v[{b}:{b+1}], v11 offset:{base+4096*t+1024*(i&3)+256*sec}")
        return L
    for half in range(2):
        if half == 1:
            A("s_barrier")
            for l in qreads(4): A(l)
            wl = wodma(0, 8, "wo2")
            wl, wl2 = wl[:wo2n], wl[wo2n:]
        else:
            for l in qreads(0): A(l)
            wl = wodma(32, 4, "wo1")
        if wl: emit(wl.pop(0))
        for i in range(4*half, 4*half+4):
            nxt = qreads(i+1) if (i & 3) < 3 else []
            for t in range(4):
                b = WB + 16*(i & 1) + 4*t
                if nxt:
                    A(nxt[2*t]); A(nxt[2*t+1])
                    A(f"s_waitcnt lgkmcnt({8})")
                else:
                    A(f"s_waitcnt lgkmcnt({6-2*t})")
                cin = "0" if (i == 0 and t == 0) else f"v[{AK}:{AK+15}]"
                A(f"v_mfma_f32_32x32x16_bf16 v[{AK}:{AK+15}], v[{b}:{b+3}], v[{X+16*i+4*t}:{X+16*i+4*t+3}], {cin}")
                if wl and (t == 2 or (half == 1 and t == 0)): emit(wl.pop(0))
        assert not wl
    A("s_barrier")
    stamp(8)
    A("s_mov_b32 s77, 0x40000")
    vm.wait("flag")
    lf = a.newlabel("Aflag"); lfd = a.newlabel("Aflagdone")
    a.label(lf)
    A("v_cmp_ne_u64 vcc, s[4:5], v[28:29]")
    A(f"s_cbranch_vccz {lfd}")
    A("s_sub_u32 s77, s77, 1")
    A(f"s_cbranch_scc1 {lfd}")
    A("s_sleep 4")
    A("global_load_dwordx2 v[28:29], v5, s[18:19] sc1")
    A("s_waitcnt vmcnt(0)")
    A(f"s_branch {lf}")
    a.label(lfd)
    A("s_lshl_b32 s40, s38, 2")
    A("s_add_u32 s40, s40, s36")
    A("s_mul_i32 s40, s40, 12288")
    A(f"s_add_u32 s40, s40, {KVOFF}")
    A("v_lshl_add_u32 v21, v1, 4, s40")
    A("v_add_u32 v22, 0x1000, v21")
    A("v_add_u32 v23, 0x2000, v21")
    PL = 144
    def h1load(i):
        ig, pg = i // 4, i % 4
        return f"global_load_dwordx4 v[{PL+4*i}:{PL+4*i+3}], v{21+ig}, s[18:19] offset:{1024*pg} sc1"
    for q in range(8):
        A(f"v_cvt_pk_bf16_f32 v{120+q}, v{AK+2*q}, v{AK+2*q+1}")
    A(f"v_mfma_f32_32x32x16_bf16 v[{AV}:{AV+15}], v[{WP}:{WP+3}], v[120:123], 0")
    A(f"v_mfma_f32_32x32x16_bf16 v[{AV}:{AV+15}], v[{WP+4}:{WP+7}], v[124:127], v[{AV}:{AV+15}]")
    lh1 = [h1load(i) for i in range(12)] + ["global_load_dwordx2 v[6:7], v8, s[18:19] sc1"]
    for l in lh1[:4]: A(l)
    A("v_and_b32 v28, 1, v1")
    A("v_lshlrev_b32 v28, 4, v28")
    A("v_mov_b32 v29, 0x3f80")
    A("v_lshlrev_b32 v29, v28, v29")
    A("v_lshrrev_b32 v28, 1, v27")
    for q in range(4):
        A(f"v_cmp_eq_u32 vcc, {q}, v28")
        A(f"v_cndmask_b32 v{116+q}, 0, v29, vcc")
    A("v_lshrrev_b32 v28, 4, v1")
    A("v_mul_u32_u24 v17, 48, v25")
    A("v_add_u32 v17, v17, v27")
    A(f"v_mul_u32_u24 v17, {KVS}, v17")
    A("v_and_b32 v28, 1, v28")
    A("v_lshl_add_u32 v17, v28, 3, v17")
    A("s_lshl_b32 s40, s36, 4")
    A(f"s_add_u32 s40, s40, {KVI}")
    A("v_add_u32 v17, s40, v17")
    A("v_lshrrev_b32 v28, 3, v26")
    A("v_and_b32 v29, 3, v1")
    A("v_lshl_add_u32 v28, v28, 2, v29")
    A("v_lshl_add_u32 v28, v25, 4, v28")
    A("v_add_u32 v29, 48, v27")
    A("v_cndmask_b32_e64 v18, v29, v28, s[46:47]")
    A("v_add_u32 v28, 32, v25")
    A("v_cndmask_b32_e64 v19, v29, v28, s[46:47]")
    A(f"v_mul_u32_u24 v18, {KVS}, v18")
    A(f"v_mul_u32_u24 v19, {KVS}, v19")
    A(f"v_add_u32 v18, {KVI}, v18")
    A(f"v_add_u32 v19, {KVI}, v19")
    A("v_lshrrev_b32 v28, 4, v1")
    A("v_bfe_u32 v29, v1, 2, 2")
    A("v_lshl_add_u32 v2, v28, 3, v29")
    A("v_lshlrev_b32 v2, 7, v2")
    A("v_lshrrev_b32 v29, 1, v29")
    A("v_and_b32 v30, 3, v1")
    A("v_xor_b32 v29, v29, v30")
    A("v_lshl_add_u32 v2, v29, 4, v2")
    A("v_and_b32 v29, 1, v28")
    A("v_lshl_add_u32 v2, v29, 6, v2")
    A("v_cmp_eq_u32_e64 s[78:79], 1, v29")
    A("v_and_b32 v29, 1, v30")
    A("v_lshl_add_u32 v2, v29, 3, v2")
    A("v_xor_b32 v3, 8, v2")
    A("v_xor_b32 v4, 64, v2")
    A("v_xor_b32 v5, 0x48, v2")
    PQ = 128
    RESB = {8: 192, 9: 208, 10: 224, 11: 240, 0: 80, 1: 96, 2: 112}
    def woreads(k, base):
        return [f"ds_read_b64_tr_b16 v[{base+4*t+2*sec}:{base+4*t+2*sec+1}], v{2+t} offset:{4096*k+512*sec}" for t in range(4) for sec in range(2)]
    H, B, Tl = softmax_stream(AV, EN, [PQ+q for q in range(16)], T, "s48")
    st = sprinkle(H + B + Tl, lh1[4:], 0, h1sp)
    wl2 = wl2 + wodma(48, 4, "wo3")
    st = sprinkle(st, wl2, 50, 110 // len(wl2))
    for l in st: emit(l)
    stamp(9)
    A("s_mov_b32 s77, 0x10000")
    lp = a.newlabel("Ah1"); lpd = a.newlabel("Ah1done")
    A(f"s_waitcnt vmcnt({len(wl2) if h1w else 0})")
    a.label(lp)
    for i in range(12):
        b = PL + 4*i
        t = 120 + (i & 3)
        A(f"v_max3_u32 v{t}, v{b}, v{b+1}, v{b+2}")
        A(f"v_max_u32 v{t}, v{t}, v{b+3}")
        A(f"v_cmp_eq_u32_e64 s[{52+2*i}:{53+2*i}], -1, v{t}")
    A("s_or_b64 s[40:41], s[52:53], s[54:55]")
    for i in range(2, 12): A(f"s_or_b64 s[40:41], s[40:41], s[{52+2*i}:{53+2*i}]")
    A(f"s_cbranch_scc0 {lpd}")
    A("s_sub_u32 s77, s77, 1")
    A(f"s_cbranch_scc1 {lpd}")
    for i in range(12):
        A(f"s_mov_b64 exec, s[{52+2*i}:{53+2*i}]")
        A(h1load(i))
    A("s_mov_b64 exec, -1")
    A("s_waitcnt vmcnt(0)")
    A(f"s_branch {lp}")
    a.label(lpd)
    A("s_mov_b32 s76, s77")
    A("v_cmp_ne_u64_e64 s[10:11], s[6:7], v[6:7]")
    if force_slow: A("s_mov_b64 s[10:11], -1")
    stamp(10)
    for pg in range(4):
        for ig in range(3):
            b = PL + 4*(4*ig+pg)
            d = AK + 4*ig
            A(f"v_mfma_f32_16x16x32_bf16 v[{d}:{d+3}], v[116:119], v[{b}:{b+3}], {'0' if pg == 0 else f'v[{d}:{d+3}]'}")
    for ig in range(3):
        d = AK + 4*ig
        A(f"v_cvt_pk_bf16_f32 v{120+2*ig}, v{d}, v{d+1}")
        A(f"v_cvt_pk_bf16_f32 v{121+2*ig}, v{d+2}, v{d+3}")
        A(f"ds_write_b64 v17, v[{120+2*ig}:{121+2*ig}] offset:{16*KVS*ig}")
    A("s_waitcnt lgkmcnt(0)")
    A("s_lshl_b32 s40, s14, 8")
    A("s_lshr_b32 s41, s36, 1")
    A("s_lshl_b32 s41, s41, 7")
    A("s_add_u32 s40, s40, s41")
    A(f"s_add_u32 s40, s40, {F2OFF}")
    A("v_lshl_add_u32 v16, v27, 3, s40")
    A("s_barrier")
    WB = PL
    for t in range(4):
        A(f"ds_read_b128 v[{WB+8*t}:{WB+8*t+3}], v19 offset:{16*t}")
        A(f"ds_read_b128 v[{WB+8*t+4}:{WB+8*t+7}], v18 offset:{16*t}")
    for t in range(4):
        A(f"s_waitcnt lgkmcnt({7-2*t})")
        A(f"v_mfma_f32_32x32x16_bf16 v[{AV}:{AV+15}], v[{WB+8*t}:{WB+8*t+3}], v[{PQ+4*t}:{PQ+4*t+3}], {'0' if t == 0 else f'v[{AV}:{AV+15}]'}")
        A(f"s_waitcnt lgkmcnt({6-2*t})")
        A(f"v_mfma_f32_32x32x16_bf16 v[{AK}:{AK+15}], v[{WB+8*t+4}:{WB+8*t+7}], v[{PQ+4*t}:{PQ+4*t+3}], {'0' if t == 0 else f'v[{AK}:{AK+15}]'}")
    A("s_lshl_b32 s40, s14, 2")
    A("s_add_u32 s40, s40, s36")
    A(f"s_mul_i32 s41, s40, {tstr}")
    A(f"s_add_u32 s41, s41, {OOFF}")
    A("v_lshl_add_u32 v21, v1, 4, s41")
    for q in range(1, 4): A(f"v_add_u32 v{21+q}, {0x1000*q}, v21")
    A("s_lshl_b32 s41, s40, 15")
    A("s_lshl_b32 s42, s15, 7")
    A("s_add_u32 s41, s41, s42")
    A("v_lshrrev_b32 v28, 4, v1")
    A("v_lshlrev_b32 v20, 11, v27")
    A("v_lshl_add_u32 v20, v28, 4, v20")
    A("v_add_u32 v20, s41, v20")
    A("v_mov_b32 v15, s8")
    A("v_mov_b32 v12, s4")
    A("v_mov_b32 v13, s5")
    A(f"v_add_f32 v120, 0x{f32bits(1e-6):08x}, v{AV}")
    A("v_rcp_f32 v120, v120")
    OD = 120
    for q in range(8):
        A(f"v_mul_f32 v{AK+2*q}, v{AK+2*q}, v120")
        A(f"v_mul_f32 v{AK+2*q+1}, v{AK+2*q+1}, v120")
        A(f"v_cvt_pk_bf16_f32 v{AV+8+q}, v{AK+2*q}, v{AK+2*q+1}")
    slow = []
    def moded(ins):
        l1 = a.newlabel("Ams"); l2 = a.newlabel("Amj")
        A("s_cmp_lg_u64 s[10:11], 0")
        A(f"s_cbranch_scc1 {l1}")
        for x in ins: A(x)
        a.label(l2)
        slow.append((l1, l2, ins))
    moded([f"global_store_dwordx4 v14, v[{AV+8}:{AV+11}], s[18:19]", f"global_store_dwordx4 v14, v[{AV+12}:{AV+15}], s[18:19] offset:256"])
    stamp(11)
    OF = 128; ACC = 32; WB = 64; NB = 4
    def h2load(k):
        return f"global_load_dwordx4 v[{OF+4*k}:{OF+4*k+3}], v{21+(k>>2)}, s[18:19] offset:{1024*(k&3)} sc1"
    wb = lambda k: WB + 16*(k % NB)
    poll = "global_load_dwordx2 v[10:11], v16, s[18:19] sc1"
    A("s_mov_b32 s77, 0x10000")
    A("s_mov_b32 s42, 0")
    if not h1w:
        for l in woreads(0, wb(0)): A(l)
    A("s_waitcnt vmcnt(0)")
    stamp(100)
    A("s_mov_b64 exec, 1")
    moded(["global_store_dwordx2 v15, v[12:13], s[18:19]"])
    A("s_mov_b64 exec, -1")
    A(poll)
    if h1w:
        A("s_barrier")
        for l in woreads(0, wb(0)): A(l)
    for l in woreads(1, wb(1)): A(l)
    ool = []
    def ensure(k):
        lp = a.newlabel("Ap"); lb = a.newlabel("Ab")
        A(f"s_bitcmp1_b32 s42, {k}")
        A(f"s_cbranch_scc0 {lp}")
        a.label(lb)
        A(h2load(k))
        ool.append((k, lp, lb))
    for k in range(D):
        ensure(k)
        if k == 0: stamp(101)
    stamp(102)
    for k in range(16):
        if k + D < 16: ensure(k + D)
        rd = woreads(k+2, wb(k+2)) if k + 2 < 16 else []
        A(f"s_waitcnt vmcnt({min(D, 15-k)}) lgkmcnt({8 if k < 15 else 0})")
        for t in range(4):
            A(f"v_mfma_f32_16x16x32_bf16 v[{ACC+4*t}:{ACC+4*t+3}], v[{wb(k)+4*t}:{wb(k)+4*t+3}], v[{OF+4*k}:{OF+4*k+3}], {'0' if k == 0 else f'v[{ACC+4*t}:{ACC+4*t+3}]'}")
            for l in rd[2*t:2*t+2]: A(l)
    if stamps:
        A("s_cmp_lg_u64 s[10:11], 0")
        A("s_cselect_b32 s40, 100, 0")
        A("s_sub_u32 s76, s76, s40")
    stamp(12)
    A("s_nop 7")
    for u in range(2):
        e, o = ACC + 8*u, ACC + 8*u + 4
        A(f"v_cvt_pk_bf16_f32 v120, v{e}, v{e+1}")
        A(f"v_cvt_pk_bf16_f32 v121, v{e+2}, v{e+3}")
        A(f"v_cvt_pk_bf16_f32 v122, v{o}, v{o+1}")
        A(f"v_cvt_pk_bf16_f32 v123, v{o+2}, v{o+3}")
        d = WB + 4*u
        A(f"v_cndmask_b32_e64 v{d}, v120, v122, s[78:79]")
        A(f"v_cndmask_b32_e64 v{d+1}, v121, v123, s[78:79]")
        A(f"v_cndmask_b32_e64 v{d+2}, v122, v120, s[78:79]")
        A(f"v_cndmask_b32_e64 v{d+3}, v123, v121, s[78:79]")
        A(f"global_store_dwordx4 v20, v[{d}:{d+3}], s[12:13] offset:{64*u} {outmod}")
    if stamps:
        A("s_waitcnt vmcnt(0)")
        stamp(13)
        n = nst[0]
        assert n <= 15
        A("s_waitcnt lgkmcnt(0)")
        A("s_lshl_b32 s38, s2, 2")
        A("s_add_u32 s38, s38, s36")
        A("s_lshl_b32 s38, s38, 7")
        A(f"s_add_u32 s38, s38, {stamps}")
        A("v_mov_b32 v2, s38")
        for i in range(n):
            A(f"v_mov_b32 v4, s{streg(i)}")
            A(f"v_mov_b32 v5, s{streg(i)+1}")
            A(f"global_store_dwordx2 v2, v[4:5], s[18:19] offset:{8*i}")
        A("v_mov_b32 v4, s77")
        A("v_mov_b32 v5, s76")
        A(f"global_store_dwordx2 v2, v[4:5], s[18:19] offset:{8*n}")
        A("s_waitcnt vmcnt(0)")
        print("A stamps", n)
    A("s_endpgm")
    for (l1, l2, ins) in slow:
        a.label(l1)
        A("s_nop 1")
        for x in ins: A(x + " sc1")
        A("s_nop 1")
        A(f"s_branch {l2}")
    for (k, lp, lb) in ool:
        a.label(lp)
        A("s_waitcnt vmcnt(0)")
        A("v_cmp_eq_u64 vcc, s[4:5], v[10:11]")
        A("s_sub_u32 s77, s77, 1")
        A("s_cselect_b32 s42, -1, vcc_lo")
        A(poll)
        A(f"s_bitcmp1_b32 s42, {k}")
        A(f"s_cbranch_scc1 {lb}")
        A(f"s_branch {lp}")
```

```python
import struct, math
from asmlib import *

def f32bits(x): return struct.unpack("<I", struct.pack("<f", x))[0]
def f32(x): return struct.unpack("<f", struct.pack("<f", x))[0]
LOG2E = math.log2(math.e)
L_HI = f32bits(LOG2E)
L_LO = f32bits(LOG2E - f32(LOG2E))
LN2 = f32bits(math.log(2.0))

KVOFF = 0x000000
FBOFF = 0x0C0000
F1OFF = 0x0C4000
F2OFF = 0x0C8000
F3OFF = 0x0CC000
YFOFF = 0x0D0000
FBF = 0x2000
FB2 = 0x14000
OOFF = 0x100000
UTOFF = 0x380000
YOFF = 0x500000
ROWS = 288
TSZ = 16512
CH0 = 128
CHS = 2*TSZ
UB = CH0 + 2*CHS
US = 4096 + 64
PRV = TSZ
CMP = 0
LIN = 1024 + 64

class Sched:
    def __init__(self): self.ops = []; self.alpha = 4.5
    def add(self, text, dst, src, lat=2, cost=1):
        self.ops.append(dict(t=text, d=list(dst), s=list(src), lat=lat, cost=cost))
    def run(self):
        ops = self.ops; n = len(ops)
        prod = {}
        preds = [[] for _ in range(n)]; succs = [[] for _ in range(n)]
        for i, o in enumerate(ops):
            for r in o["s"]:
                if r in prod: preds[i].append(prod[r]); succs[prod[r]].append(i)
            for r in o["d"]: prod[r] = i
        pr = [0]*n
        for i in reversed(range(n)):
            pr[i] = ops[i]["lat"] + max([pr[j] for j in succs[i]], default=0)
        done = [None]*n; out = []; t = 0; left = set(range(n)); lastds = -10
        while left:
            cand = [i for i in left if all(done[p] is not None for p in preds[i])]
            def rdy(i): return max([done[p] + ops[p]["lat"] for p in preds[i]], default=0)
            ok = [i for i in cand if rdy(i) <= t]
            if ok:
                isds = lambda k: ops[k]["t"].startswith("ds_")
                ok2 = [k for k in ok if not (isds(k) and t - lastds < 5)] or ok
                imax = max(ok2, key=lambda i: (pr[i], -i))
                if pr[imax]*self.alpha >= len(left): i = imax
                else: i = min(ok2, key=lambda i: (pr[i], i))
                if isds(i): lastds = t
            else: i = min(cand, key=lambda i: (rdy(i), -pr[i])); t = rdy(i)
            done[i] = t; out.append(ops[i]["t"]); left.remove(i); t += ops[i]["cost"]
        return out, t

def kgen_stream(P, DT, sL, base):
    S = Sched()
    nxt = [base]
    def R(k=1):
        r = nxt[0]; nxt[0] += k; return r
    are, aim, bre, bim, cre, cim = P
    def op(t, d, s, **kw): S.add(t, d, s, **kw)
    a1, p1, br, bi, a2, phi = [R() for _ in range(6)]
    op(f"v_mul_f32 v{a1}, v{DT}, v{are}", [a1], [])
    op(f"v_mul_f32 v{p1}, v{DT}, v{aim}", [p1], [])
    op(f"v_mul_f32 v{br}, v{DT}, v{bre}", [br], [])
    op(f"v_mul_f32 v{bi}, v{DT}, v{bim}", [bi], [])
    op(f"v_mul_f32 v{a2}, {sL}, v{a1}", [a2], [a1])
    op(f"v_mul_f32 v{phi}, 0.15915494, v{p1}", [phi], [p1])
    t0, t1 = R(), R(); F = (R(), R())
    op(f"v_mul_f32_e64 v{t0}, v{cim}, -v{bi}", [t0], [bi])
    op(f"v_mul_f32_e64 v{t1}, v{cim}, -v{br}", [t1], [br])
    op(f"v_fma_f32 v{F[0]}, v{cre}, v{br}, v{t0}", [F[0]], [br, t0])
    op(f"v_fma_f32 v{F[1]}, -v{cre}, v{bi}, v{t1}", [F[1]], [bi, t1])
    def anchor(g, conj):
        e, p, s, c = R(), R(), R(), R()
        if g == 1:
            ea, pa = a2, phi
        else:
            ea, pa = R(), R()
            op(f"v_mul_f32 v{ea}, 0x{f32bits(float(g)):08x}, v{a2}", [ea], [a2])
            op(f"v_mul_f32 v{pa}, 0x{f32bits(float(g)):08x}, v{phi}", [pa], [phi])
        op(f"v_exp_f32 v{e}, v{ea}", [e], [ea], lat=4, cost=2)
        op(f"v_fract_f32 v{p}, v{pa}", [p], [pa])
        op(f"v_sin_f32 v{s}, v{p}", [s], [p], lat=4, cost=2)
        op(f"v_cos_f32 v{c}, v{p}", [c], [p], lat=4, cost=2)
        z = (R(), R())
        op(f"v_mul_f32 v{z[0]}, v{e}, v{c}", [z[0]], [e, c])
        if conj: op(f"v_mul_f32_e64 v{z[1]}, v{e}, -v{s}", [z[1]], [e, s])
        else: op(f"v_mul_f32 v{z[1]}, v{e}, v{s}", [z[1]], [e, s])
        return z
    Z8 = anchor(8, 1); Z128 = anchor(128, 0); Z1 = anchor(1, 0)
    S.alpha = 1e9
    pre, t = S.run()
    def put(row, z):
        r = R()
        return [f"v_cvt_pk_bf16_f32 v{r}, v{z[0]}, v{z[1]}", f"ds_write_addtid_b32 v{r} offset:{row*ROWS}"]
    def cmul(x, y, row):
        d = (R(), R())
        L = [f"v_mul_f32_e64 v{d[0]}, v{x[1]}, -v{y[1]}", f"v_mul_f32 v{d[1]}, v{x[1]}, v{y[0]}",
             f"v_fmac_f32 v{d[0]}, v{x[0]}, v{y[0]}", f"v_fmac_f32 v{d[1]}, v{x[0]}, v{y[1]}"] + put(row, d)
        return d, L
    X, Y = put(0, F) + put(24, Z128), put(17, Z1)
    f = F
    for c in range(1, 16):
        f, L = cmul(f, Z8, c); X += L
    Rr = [None, Z1]
    for r in range(2, 8):
        d, L = cmul(Rr[r-1], Z1, 16+r); Rr.append(d); Y += L
    Qs = [None, Z128]
    for q in range(2, 17):
        row = 32 + 4*(q-2) if q < 4 else (40 + 2*(q-4) if q < 8 else 40 + q)
        d, L = cmul(Qs[q-1], Z128, row); Qs.append(d); Y += L
    leafs = [(Rr[r], Qs[1], 24+r) for r in range(1, 8)] + [(Rr[2*r], Qs[q], 32+4*(q-2)+r) for q in (2, 3) for r in range(1, 4)] + \
            [(Rr[4], Qs[q], 41+2*(q-4)) for q in range(4, 8)]
    for k, (x, y, row) in enumerate(leafs):
        d, L = cmul(x, y, row)
        if k < 11: X += L
        else: Y += L
    out = list(pre)
    for k in range(max(len(X), len(Y))):
        if k < len(X): out.append(X[k])
        if k < len(Y): out.append(Y[k])
    assert nxt[0] <= 256, nxt[0]
    return out, len(out)

def emit_B(a, stamps=None, prio=None, prio2=None, i1=40, i2=230, uearly=True, ysleep=1, nomem=False, force_slow=False, outmod='', i0=None, nonce=False):
    def A(t):
        if nomem:
            t = "\n".join(l for l in t.split("\n") if not ((" sc1" in l) or (" lds" in l) or ("s[22:23]" in l and "store" in l) or ("s_cbranch_vccz" in l and False)))
            if "0x40000" in t: t = t.replace("0x40000", "0")
            if not t: return
        a(t)
    nst = [0]
    def stamp():
        if stamps:
            i = nst[0]; nst[0] += 1
            A(f"s_memtime s[{64+2*i}:{65+2*i}]")
    stamp()
    A("s_load_dwordx16 s[4:19], s[0:1], 32")
    A("s_load_dwordx4 s[20:23], s[0:1], 96")
    A("s_load_dwordx4 s[40:43], s[0:1], 112")
    if prio is not None: A(f"s_setprio {prio}")
    A("v_and_b32 v1, 63, v0")
    A("v_lshrrev_b32 v2, 6, v0")
    A("s_getreg_b32 s3, hwreg(HW_REG_XCC_ID, 0, 4)")
    A("s_and_b32 s25, s2, 7")
    A("s_lshr_b32 s26, s2, 3")
    A("v_readfirstlane_b32 s24, v2")
    A("s_lshl_b32 s27, s25, 6")
    A("s_lshl_b32 s28, s26, 1")
    A("s_add_u32 s27, s27, s28")
    A("s_and_b32 s29, s24, 1")
    A("s_lshr_b32 s30, s24, 1")
    A("s_add_u32 s28, s27, s29")
    A("s_lshl_b32 s38, s28, 8")
    A("s_lshl_b32 s39, s30, 7")
    A("s_add_u32 s38, s38, s39")
    A("v_lshl_add_u32 v25, v1, 1, s38")
    A("s_lshl_b32 s38, s28, 1")
    A("v_mov_b32 v26, s38")
    for i in range(6): A(f"v_mov_b32 v{2+i}, 0")
    A("s_lshl_b32 s38, s26, 16")
    A("s_lshl_b32 s39, s24, 14")
    A("s_add_u32 s38, s38, s39")
    A("s_lshl_b32 s39, s25, 7")
    A("s_add_u32 s38, s38, s39")
    A("v_lshrrev_b32 v16, 3, v1")
    A("v_bfe_u32 v17, v1, 4, 1")
    A("v_and_b32 v18, 7, v1")
    A("v_xor_b32 v17, v17, v18")
    A("v_lshlrev_b32 v16, 10, v16")
    A("v_lshl_add_u32 v16, v17, 4, v16")
    A("s_lshl_b32 s39, s29, 6")
    A("v_xor_b32 v16, s39, v16")
    A("v_add_u32 v16, s38, v16")
    A("v_xor_b32 v17, 32, v16")
    A("s_lshl_b32 s37, s24, 11")
    A(f"s_add_u32 s37, s37, {UB}")
    if nonce: A("s_memrealtime s[50:51]")
    A("s_waitcnt lgkmcnt(0)")
    if nonce:
        lnn = a.newlabel("Bnon")
        A("s_or_b32 s38, s2, s24")
        A(f"s_cbranch_scc1 {lnn}")
        A("s_or_b32 s50, s50, 1")
        A("s_bitset1_b32 s51, 31")
        A("v_mov_b32 v125, 0")
        A("v_mov_b32 v126, s50")
        A("v_mov_b32 v127, s51")
        A("s_mov_b64 exec, 1")
        a("global_store_dwordx2 v125, v[126:127], s[40:41] sc1")
        A("s_mov_b64 exec, -1")
        a.label(lnn)
    A("global_load_ushort v30, v26, s[18:19]")
    A("global_load_ushort v31, v26, s[20:21]")
    for i in range(6):
        A(f"global_load_short_d16_hi v{2+i}, v25, s[{6+2*i}:{7+2*i}]")
    A("s_mov_b32 s44, s4"); A("s_mov_b32 s45, s5"); A(f"s_mov_b32 s46, {2048*1024}"); A("s_mov_b32 s47, 0x00020000")
    def udma():
        A("s_mov_b32 m0, s37")
        A("s_movk_i32 s38, 0x2000")
        A("buffer_load_dwordx4 v16, s[44:47], 0 offen lds")
        A("s_add_u32 m0, s37, 1024")
        A("s_nop 0")
        A("buffer_load_dwordx4 v17, s[44:47], s38 offen lds")
    if uearly: udma()
    nu = 2 if uearly else 0
    A(f"s_mul_i32 s31, s29, {CHS}")
    A(f"s_add_u32 s31, s31, {CH0}")
    A(f"s_mul_i32 s32, s30, {TSZ}")
    A("s_add_u32 s32, s32, s31")
    A("s_lshl_b32 s33, s30, 13")
    A("s_add_u32 s33, s33, s31")
    A(f"s_add_u32 s33, s33, {PRV}")
    A("s_mov_b32 s34, 0x01000100")
    A("s_mov_b32 s35, 0x03020302")
    A("v_and_b32 v35, 15, v1")
    A("v_lshrrev_b32 v36, 4, v1")
    A("v_and_b32 v37, 3, v1")
    A("v_bfe_u32 v38, v1, 2, 2")
    A("v_mul_u32_u24 v33, %d, v35" % ROWS)
    A("v_lshl_add_u32 v33, v36, 4, v33")
    A("v_add_u32 v33, s31, v33")
    A("v_min_u32 v34, 8, v35")
    A("v_mul_u32_u24 v34, %d, v34" % ROWS)
    A("v_lshl_add_u32 v34, v36, 4, v34")
    A(f"s_add_u32 s38, s31, {48*ROWS}")
    A("v_add_u32 v34, s38, v34")
    A("v_lshrrev_b32 v39, 5, v1")
    A("v_lshl_add_u32 v18, v39, 2, v37")
    A("v_lshl_add_u32 v18, v18, 3, v38")
    A("v_lshlrev_b32 v18, 7, v18")
    A("v_lshrrev_b32 v19, 1, v38")
    A("v_lshl_add_u32 v19, v37, 1, v19")
    A("v_lshl_add_u32 v18, v19, 4, v18")
    A("v_and_b32 v24, 1, v36")
    A("v_lshl_add_u32 v18, v24, 3, v18")
    A("s_lshl_b32 s38, s24, 5")
    A("v_xor_b32 v18, s38, v18")
    A(f"v_add_u32 v18, {UB}, v18")
    A("v_xor_b32 v19, 16, v18")
    A("s_lshl_b32 s38, s25, 18")
    A("s_lshl_b32 s39, s24, 16")
    A("s_add_u32 s38, s38, s39")
    A("s_lshl_b32 s39, s26, 8")
    A("s_add_u32 s38, s38, s39")
    A(f"s_add_u32 s38, s38, {UTOFF}")
    A("v_lshrrev_b32 v21, 1, v37")
    A("v_lshl_add_u32 v21, v24, 1, v21")
    A("v_lshlrev_b32 v20, 13, v21")
    A("v_lshl_add_u32 v21, v39, 2, v38")
    A("v_lshl_add_u32 v20, v21, 5, v20")
    A("v_and_b32 v21, 1, v1")
    A("v_lshl_add_u32 v20, v21, 4, v20")
    A("v_add_u32 v20, s38, v20")
    A("v_add_u32 v21, 0x8000, v20")
    A("s_lshl_b32 s36, s2, 2")
    A("s_add_u32 s36, s36, s24")
    A("s_lshl_b32 s38, s30, 21")
    A("s_lshr_b32 s39, s26, 4")
    A("s_lshl_b32 s39, s39, 19")
    A("s_add_u32 s38, s38, s39")
    A("s_and_b32 s39, s28, 31")
    A("s_lshl_b32 s39, s39, 11")
    A("s_add_u32 s38, s38, s39")
    A("s_lshl_b32 s39, s25, 7")
    A("s_add_u32 s38, s38, s39")
    A("s_add_u32 s38, s38, 1024")
    A("v_lshrrev_b32 v22, 1, v35")
    A("v_lshlrev_b32 v22, 16, v22")
    A("v_and_b32 v23, 1, v1")
    A("v_lshl_add_u32 v22, v23, 6, v22")
    A("v_lshl_add_u32 v22, v36, 4, v22")
    A("v_add_u32 v22, s38, v22")
    A("v_add_u32 v23, 0x100000, v22")
    A("s_lshl_b32 s3, s3, 27")
    A("v_mov_b32 v27, 0")
    A("v_mov_b32 v32, 0x3f80")
    A(f"s_waitcnt vmcnt({6+nu})")
    A("v_lshlrev_b32 v30, 16, v30")
    A("s_mov_b32 s48, 0x%08x" % L_HI)
    A("v_mul_f32 v28, s48, v30")
    A("v_fma_f32 v29, v30, s48, -v28")
    A("v_fmac_f32 v29, 0x%08x, v30" % L_LO)
    A("v_exp_f32 v28, v28")
    A("v_mul_f32 v29, 0x%08x, v29" % LN2)
    A("v_fmac_f32 v28, v28, v29")
    A("v_cvt_pk_bf16_f32 v28, v28, v28")
    A("v_lshlrev_b32 v30, 16, v28")
    A("v_lshlrev_b32 v31, 16, v31")
    A("v_cmp_eq_u32 vcc, 0, v1")
    A("v_cndmask_b32 v31, 0, v31, vcc")
    A(f"s_waitcnt vmcnt({nu})")
    stamp()
    if not uearly and i0 is None: udma()
    A("s_mov_b32 m0, s32")
    ks, kt = kgen_stream(list(range(2, 8)), 30, "s48", 52)
    print("kgen", len(ks), "instrs, model slots", kt)
    A(f"ds_write_addtid_b32 v32 offset:{16*ROWS}")
    for idx, l in enumerate(ks):
        if idx == i0 and not uearly:
            udma(); A("s_mov_b32 m0, s32")
        if idx == i1:
            A("s_waitcnt vmcnt(0)")
            A("s_barrier")
            for q in range(2):
                for sec in range(2):
                    A(f"ds_read_b64_tr_b16 v[{8+4*q+2*sec}:{9+4*q+2*sec}], v{18+q} offset:{512*sec}")
            A("s_waitcnt lgkmcnt(2)")
            A("global_store_dwordx4 v20, v[8:11], s[42:43]")
            A("s_waitcnt lgkmcnt(0)")
            A("global_store_dwordx4 v21, v[12:15], s[42:43]")
            stamp()
        if idx == (i1 + i2)//2:
            A("global_load_dwordx2 v[28:29], v27, s[40:41]")
        if idx == i2:
            A("s_lshl_b32 s38, s25, 10")
            A("s_lshl_b32 s39, s26, 3")
            A("s_add_u32 s38, s38, s39")
            A("s_lshl_b32 s39, s24, 8")
            A("s_add_u32 s38, s38, s39")
            A(f"s_add_u32 s38, s38, {FBOFF}")
            A("v_mov_b32 v26, s38")
            A(f"s_add_u32 s8, s38, {FB2}")
            A(f"v_add_u32 v25, {FBF}, v26")
            A("s_mov_b32 s49, 0x40000")
            ln = a.newlabel("Bnonce"); lnd = a.newlabel("Bnonced")
            a.label(ln)
            A("s_waitcnt vmcnt(0)")
            A("v_readfirstlane_b32 s50, v28")
            A("v_readfirstlane_b32 s51, v29")
            A("s_min_u32 s38, s50, s51")
            A("s_cmp_lg_u32 s38, 0")
            A(f"s_cbranch_scc1 {lnd}")
            A("s_sub_u32 s49, s49, 1")
            A(f"s_cbranch_scc1 {lnd}")
            A("s_sleep 2")
            A("global_load_dwordx2 v[28:29], v27, s[40:41] sc1")
            A(f"s_branch {ln}")
            a.label(lnd)
            A("s_or_b32 s5, s51, s3")
            A("s_mov_b32 s4, s50")
            A("v_mov_b32 v29, s5")
            A("s_mov_b64 exec, 1")
            A("global_store_dwordx2 v25, v[28:29], s[42:43]")
            A("s_mov_b64 exec, -1")
            stamp()
        A(l)
    A("s_lshl_b32 s38, s25, 10")
    A("s_lshr_b32 s39, s26, 3")
    A("s_lshl_b32 s39, s39, 8")
    A("s_add_u32 s38, s38, s39")
    A(f"s_add_u32 s38, s38, {FBOFF}")
    A("v_and_b32 v26, 31, v1")
    A("v_lshl_add_u32 v26, v26, 3, s38")
    A(f"v_add_u32 v25, {FB2}, v26")
    A("v_xor_b32 v27, 1, v39")
    A("v_lshl_add_u32 v26, v27, 13, v26")
    A("s_lshl_b32 s38, s27, 12")
    A("s_lshl_b32 s39, s24, 11")
    A("s_add_u32 s38, s38, s39")
    A(f"s_add_u32 s38, s38, {UTOFF}")
    A("v_lshl_add_u32 v27, v1, 4, s38")
    A("s_waitcnt lgkmcnt(0)")
    stamp()
    A("s_barrier")
    A("global_load_dwordx2 v[28:29], v26, s[42:43] sc1")
    D = 40
    OP = 64
    for k in range(8):
        b = OP + 16*k
        o = 64*(k & 3) + TSZ*(k >> 2)
        A(f"ds_read_b128 v[{b}:{b+3}], v33 offset:{o}")
        A(f"ds_read_b128 v[{b+4}:{b+7}], v33 offset:{o+16*ROWS}")
        A(f"ds_read_b128 v[{b+8}:{b+11}], v33 offset:{o+32*ROWS}")
        A(f"ds_read_b128 v[{b+12}:{b+15}], v34 offset:{o}")
        if k >= 3:
            kk = k - 3; bb = OP + 16*kk
            A("s_waitcnt lgkmcnt(12)")
            for t in range(3):
                A(f"v_mfma_f32_16x16x32_bf16 v[{D+4*t}:{D+4*t+3}], v[{bb+4+4*t}:{bb+7+4*t}], v[{bb}:{bb+3}], {'0' if kk == 0 else f'v[{D+4*t}:{D+4*t+3}]'}")
    for kk in range(5, 8):
        bb = OP + 16*kk
        A(f"s_waitcnt lgkmcnt({4*(7-kk)})")
        if kk == 7: A("s_barrier")
        for t in range(3):
            A(f"v_mfma_f32_16x16x32_bf16 v[{D+4*t}:{D+4*t+3}], v[{bb+4+4*t}:{bb+7+4*t}], v[{bb}:{bb+3}], v[{D+4*t}:{D+4*t+3}]")
    A("s_mov_b32 s49, 0x40000")
    lf = a.newlabel("Bflag"); lfd = a.newlabel("Bflagdone"); lslow = a.newlabel("Bslow"); lgo = a.newlabel("Bgo"); lfw = a.newlabel("Bflagw")
    A("s_waitcnt vmcnt(0)")
    A("v_cmp_ne_u64_e64 s[6:7], s[4:5], v[28:29]")
    A("s_cmp_lg_u32 s6, 0")
    A(f"s_cbranch_scc1 {lfw}" if not force_slow else f"s_branch {lfw}")
    a.label(lfd)
    A("s_mov_b64 s[6:7], 0")
    a.label(lgo)
    def ool(lf=lf, lfd=lfd):
        a.label(lf)
        A("s_waitcnt vmcnt(0)")
        A("v_cmp_ne_u64_e64 s[6:7], s[4:5], v[28:29]")
        A("s_cmp_eq_u32 s6, 0")
        if not force_slow: A(f"s_cbranch_scc1 {lfd}")
        a.label(lfw)
        A("v_and_b32 v29, 0x87ffffff, v29")
        A("v_cmp_ne_u64 vcc, s[50:51], v[28:29]")
        A("s_cmp_eq_u32 vcc_hi, 0")
        A(f"s_cbranch_scc1 {lslow}")
        A("s_sub_u32 s49, s49, 1")
        A(f"s_cbranch_scc1 {lfd}")
        lns = a.newlabel("Bnos")
        A(f"s_cmp_lg_u32 s49, {0x40000 - 8}")
        A(f"s_cbranch_scc1 {lns}")
        A(f"s_sub_u32 s38, s8, {FB2}")
        A("v_mov_b32 v30, s38")
        A("v_mov_b32 v28, s4")
        A("v_mov_b32 v29, s5")
        A("s_mov_b64 exec, 1")
        A("global_store_dwordx2 v30, v[28:29], s[42:43] sc1")
        A("s_mov_b64 exec, -1")
        A("s_waitcnt vmcnt(0)")
        a.label(lns)
        A("s_sleep 2")
        A("global_load_dwordx2 v[28:29], v26, s[42:43] sc1")
        A(f"s_branch {lf}")
        a.label(lslow)
        A("s_cmp_eq_u32 s7, 0")
        if not force_slow: A(f"s_cbranch_scc1 {lfd}")
        A(f"s_sub_u32 s38, s8, {FB2}")
        A("v_mov_b32 v30, s38")
        A("v_mov_b32 v28, s4")
        A("v_mov_b32 v29, s5")
        A("s_mov_b64 exec, 1")
        A("global_store_dwordx2 v30, v[28:29], s[42:43] sc1")
        A("s_mov_b64 exec, -1")
        A("global_store_dwordx4 v20, v[8:11], s[42:43] sc1")
        A("global_store_dwordx4 v21, v[12:15], s[42:43] sc1")
        A("s_waitcnt vmcnt(0)")
        A("v_mov_b32 v26, s8")
        A("v_mov_b32 v29, s51")
        A("s_mov_b64 exec, 1")
        A("global_store_dwordx2 v26, v[28:29], s[42:43] sc1")
        A("s_mov_b64 exec, -1")
        A("s_mov_b64 s[6:7], -1")
        l2 = a.newlabel("Bflag2")
        a.label(l2)
        A("s_nop 1")
        A("global_load_dwordx2 v[28:29], v25, s[42:43] sc1")
        A("s_waitcnt vmcnt(0)")
        A("v_cmp_ne_u64 vcc, s[50:51], v[28:29]")
        A(f"s_cbranch_vccz {lgo}")
        A("s_sub_u32 s49, s49, 1")
        A(f"s_cbranch_scc1 {lgo}")
        A("s_sleep 2")
        A(f"s_branch {l2}")
    for j in range(2):
        A(f"global_load_dwordx4 v[{8+4*j}:{11+4*j}], v27, s[42:43] offset:{1024*j} sc1")
    stamp()
    A("v_lshlrev_b32 v53, 8, v39")
    A("v_lshl_add_u32 v53, v35, 4, v53")
    A("v_lshl_add_u32 v53, v24, 3, v53")
    A("v_add_u32 v53, s33, v53")
    A("v_cmp_gt_u32 vcc, 2, v36")
    A("v_lshlrev_b32 v54, 2, v35")
    A("v_lshlrev_b32 v55, 3, v35")
    A("v_cndmask_b32 v54, v54, v55, vcc")
    A("v_lshl_add_u32 v54, v36, 7, v54")
    A("v_add_u32 v54, s33, v54")
    A("v_cndmask_b32 v55, 64, 4, vcc")
    A("v_add_u32 v55, v54, v55")
    A("v_lshlrev_b32 v78, 1, v35")
    A("v_lshl_add_u32 v78, v36, 7, v78")
    A("v_add_u32 v78, s33, v78")
    A("v_mov_b32 v80, 0")
    A("v_mov_b32 v81, 0")
    A("v_mov_b32 v79, s33")
    A(f"ds_write_b64 v79, v[80:81] offset:{LIN-8}")
    A(f"v_add_f32 v{D}, v{D}, v31")
    for t in range(3):
        A(f"v_cvt_pk_bf16_f32 v{72+2*t}, v{D+4*t}, v{D+4*t+1}")
        A(f"v_cvt_pk_bf16_f32 v{73+2*t}, v{D+4*t+2}, v{D+4*t+3}")
    A(f"ds_write_b32 v54, v74 offset:{CMP}")
    A(f"ds_write_b32 v55, v75 offset:{CMP}")
    A(f"ds_write_b16 v78, v76 offset:{CMP+512}")
    A(f"ds_write_b16_d16_hi v78, v76 offset:{CMP+512+32}")
    A(f"ds_write_b16 v78, v77 offset:{CMP+512+64}")
    A(f"ds_write_b16_d16_hi v78, v77 offset:{CMP+512+96}")
    A(f"ds_write_b64 v53, v[72:73] offset:{LIN}")
    A("v_lshl_add_u32 v82, v1, 3, s33")
    A("v_lshl_add_u32 v83, v1, 4, s33")
    A("v_lshl_add_u32 v79, v1, 5, s33")
    A("v_lshl_add_u32 v32, v1, 2, s33")
    A("s_waitcnt lgkmcnt(1)")
    A(f"ds_read_b64 v[84:85], v82 offset:{CMP}")
    A(f"ds_read_u16 v86, v82 offset:{CMP+8}")
    A(f"ds_read_b32 v87, v32 offset:{CMP+256}")
    A(f"ds_read_u16 v88, v32 offset:{CMP+260}")
    A(f"ds_read_b32 v89, v32 offset:{CMP+512}")
    A(f"ds_read_u16 v90, v32 offset:{CMP+516}")
    A("s_lshl_b32 s38, s30, 11")
    A("v_add_u32 v82, s38, v82")
    A("s_lshl_b32 s38, s30, 13")
    A("s_add_u32 s38, s38, s31")
    A("v_lshl_add_u32 v61, v1, 5, s38")
    A("s_waitcnt lgkmcnt(4)")
    A("v_perm_b32 v92, v84, v84, s34")
    A("v_alignbit_b32 v93, v85, v84, 16")
    A("v_perm_b32 v94, v85, v85, s34")
    A("v_alignbit_b32 v95, v86, v85, 16")
    A(f"ds_write_b128 v83, v[92:95] offset:{LIN+512}")
    A("s_waitcnt lgkmcnt(3)")
    A("v_perm_b32 v96, v87, v87, s34")
    A("v_mov_b32 v97, v87")
    A("v_perm_b32 v98, v87, v87, s35")
    A("v_perm_b32 v99, v88, v88, s34")
    A(f"ds_write_b128 v83, v[96:99] offset:{LIN+1024}")
    A("s_waitcnt lgkmcnt(2)")
    A("v_perm_b32 v100, v89, v89, s34")
    A("v_perm_b32 v101, v89, v89, s34")
    A("v_mov_b32 v102, v89")
    A("v_perm_b32 v103, v89, v89, s35")
    A("v_perm_b32 v104, v89, v89, s35")
    A("v_perm_b32 v105, v89, v89, s35")
    A("v_perm_b32 v106, v90, v90, s34")
    A("v_perm_b32 v107, v90, v90, s34")
    A(f"ds_write_b128 v79, v[100:103] offset:{LIN+2048}")
    A(f"ds_write_b128 v79, v[104:107] offset:{LIN+2048+16}")
    A("v_lshlrev_b32 v52, 5, v37")
    A("v_lshl_add_u32 v52, v38, 3, v52")
    A("v_lshlrev_b32 v55, 6, v36")
    A("v_sub_u32 v52, v52, v55")
    A("s_lshl_b32 s38, s30, 10")
    A("s_add_u32 s38, s38, s31")
    A("s_add_u32 s38, s38, 96")
    A("v_add_u32 v52, s38, v52")
    A("v_lshlrev_b32 v56, 5, v35")
    A("v_lshl_add_u32 v56, v36, 4, v56")
    A("s_lshl_b32 s38, s30, 8")
    A("v_subrev_u32 v56, s38, v56")
    A(f"s_mul_i32 s38, s29, {US}")
    A(f"s_add_u32 s38, s38, {UB+32}")
    A("v_add_u32 v57, s38, v56")
    A("s_waitcnt lgkmcnt(0)")
    O = 100
    for j in range(4):
        b = O + 10*j
        A(f"ds_read_b64 v[{b+8}:{b+9}], v82 offset:{LIN-8+512*j}")
        A(f"ds_read_b64 v[{b}:{b+1}], v82 offset:{LIN+512*j}")
    for tau in range(4):
        if 64*tau+32 <= 64: A(f"v_cmp_le_i32_e64 s[{52+2*tau}:{53+2*tau}], {64*tau+32}, v56")
        else:
            A(f"v_cmp_le_i32 vcc, 0x{64*tau+32:x}, v56")
            A(f"s_mov_b64 s[{52+2*tau}:{53+2*tau}], vcc")
    A("v_lshlrev_b32 v58, 3, v36")
    A("v_sub_u32 v58, v35, v58")
    A("s_lshl_b32 s38, s30, 6")
    A("v_add_u32 v58, s38, v58")
    A("v_cmp_le_i32_e64 s[60:61], -16, v58")
    A("v_cmp_le_i32_e64 s[62:63], -12, v58")
    for j in range(4):
        b = O + 10*j
        A(f"s_waitcnt lgkmcnt({6-2*j+2*j})" if False else f"s_waitcnt lgkmcnt({6})")
        A(f"v_alignbit_b32 v{b+2}, v{b}, v{b+9}, 16")
        A(f"v_alignbit_b32 v{b+3}, v{b+1}, v{b}, 16")
        A(f"v_mov_b32 v{b+4}, v{b+9}")
        A(f"v_mov_b32 v{b+5}, v{b}")
        A(f"v_alignbit_b32 v{b+6}, v{b+9}, v{b+8}, 16")
        A(f"v_alignbit_b32 v{b+7}, v{b}, v{b+9}, 16")
        A(f"ds_write_b128 v61, v[{b}:{b+3}] offset:{2048*j}")
        A(f"ds_write_b128 v61, v[{b+4}:{b+7}] offset:{2048*j+16}")
    A("v_and_b32 v59, 1, v1")
    A(f"v_mul_u32_u24 v59, {US}, v59")
    A("v_lshrrev_b32 v60, 1, v1")
    A("v_lshl_add_u32 v59, v60, 4, v59")
    A("s_lshl_b32 s38, s24, 10")
    A(f"s_add_u32 s38, s38, {UB}")
    A("v_add_u32 v59, s38, v59")
    stamp()
    A("s_waitcnt vmcnt(0)")
    for j in range(2):
        A(f"ds_write_b128 v59, v[{8+4*j}:{11+4*j}] offset:{512*j}")
    A("s_waitcnt lgkmcnt(0)")
    stamp()
    A("s_barrier")
    ACC = 64
    SET = [96, 160]
    def loads(tau):
        s = SET[tau & 1]
        L = []
        for x in range(8):
            ar = s + 4*x
            L.append(f"ds_read_b64_tr_b16 v[{ar}:{ar+1}], v52 offset:{2048*x+256*tau+32}")
            L.append(f"ds_read_b64_tr_b16 v[{ar+2}:{ar+3}], v52 offset:{2048*x+256*tau}")
            br = s + 32 + 4*x
            if x == 0:
                L.append("\n".join([f"v_mov_b32 v{br+i}, 0" for i in range(4)] +
                    [f"v_subrev_u32 v59, {64*tau+64 if 64*tau+64<=64 else hex(64*tau+64)}, v57",
                     f"s_mov_b64 exec, s[{52+2*tau}:{53+2*tau}]",
                     f"ds_read_b128 v[{br}:{br+3}], v59",
                     "s_mov_b64 exec, -1"]))
            else:
                L.append(f"ds_read_b128 v[{br}:{br+3}], v57 offset:{512*(x-1)+64*(7-tau)}")
        return L
    for l in loads(0): A(l)
    A("v_xor_b32 v60, 0x2000, v83") if False else None
    A("s_xor_b32 s38, s30, 1")
    A("s_lshl_b32 s38, s38, 13")
    A("s_add_u32 s38, s38, s31")
    A(f"s_add_u32 s38, s38, {PRV}")
    A("v_lshl_add_u32 v60, v1, 4, s38")
    A("v_mov_b32 v61, v83")
    if prio2 is not None: A(f"s_setprio {prio2}")
    first = [True]*8
    for tau in range(4):
        s = SET[tau & 1]
        A("s_waitcnt lgkmcnt(0)")
        if tau == 0:
            A(f"v_cndmask_b32_e64 v{s}, 0, v{s}, s[60:61]")
            A(f"v_cndmask_b32_e64 v{s+1}, 0, v{s+1}, s[60:61]")
            A(f"v_cndmask_b32_e64 v{s+2}, 0, v{s+2}, s[62:63]")
            A(f"v_cndmask_b32_e64 v{s+3}, 0, v{s+3}, s[62:63]")
        nxt = loads(tau+1) if tau < 3 else []
        pairs = [(x, c) for x in range(8) for c in range(8-x)]
        for idx, (x, c) in enumerate(pairs):
            i = x + c
            acc = f"v[{ACC+4*i}:{ACC+4*i+3}]"
            cin = "0" if first[i] else acc
            first[i] = False
            A(f"v_mfma_f32_16x16x32_bf16 {acc}, v[{s+4*x}:{s+4*x+3}], v[{s+32+4*c}:{s+32+4*c+3}], {cin}")
            if idx < len(nxt):
                A(nxt[idx])
    stamp()
    lh1 = a.newlabel("Bh1"); lj = a.newlabel("Bj")
    A("s_cmp_lg_u32 s30, 0")
    A(f"s_cbranch_scc1 {lh1}")
    for h in range(2):
        if h == 1: a.label(lh1)
        A("s_nop 7")
        snd = ACC + 16*(1-h); keep = ACC + 16*h
        for q in range(4):
            A(f"ds_write_b128 v61, v[{snd+4*q}:{snd+4*q+3}] offset:{1024*q}")
        A("s_waitcnt lgkmcnt(0)")
        A("s_barrier")
        for q in range(4):
            A(f"ds_read_b128 v[{96+4*q}:{99+4*q}], v60 offset:{1024*q}")
        for q in range(4):
            A(f"s_waitcnt lgkmcnt({3-q})")
            for r in range(4):
                A(f"v_add_f32 v{96+4*q+r}, v{96+4*q+r}, v{keep+4*q+r}")
            A(f"v_cvt_pk_bf16_f32 v{112+2*q}, v{96+4*q}, v{97+4*q}")
            A(f"v_cvt_pk_bf16_f32 v{113+2*q}, v{98+4*q}, v{99+4*q}")
        if h == 0: A(f"s_branch {lj}")
    a.label(lj)
    def moded(ins):
        l1 = a.newlabel("Bms"); l2 = a.newlabel("Bmj")
        A("s_cmp_lg_u64 s[6:7], 0")
        A(f"s_cbranch_scc1 {l1}")
        for x in ins:
            if not nomem: A(x)
        A(f"s_branch {l2}")
        a.label(l1)
        for x in ins: A(x + " sc1")
        a.label(l2)
    moded(["global_store_dwordx4 v22, v[112:115], s[22:23]", "global_store_dwordx4 v23, v[116:119], s[22:23]"])
    A("s_lshl_b32 s38, s25, 10")
    A(f"s_add_u32 s38, s38, {YFOFF}")
    A("s_lshl_b32 s39, s30, 9")
    A("s_add_u32 s39, s39, s38")
    A("s_and_b32 s52, s28, 63")
    A("s_lshl_b32 s52, s52, 3")
    A("s_add_u32 s39, s39, s52")
    A("v_mov_b32 v2, s39")
    A("s_lshr_b32 s39, s26, 4")
    A("s_lshl_b32 s39, s39, 9")
    A("s_add_u32 s39, s39, s38")
    A("s_lshl_b32 s52, s24, 7")
    A("s_add_u32 s39, s39, s52")
    A("v_lshl_add_u32 v3, v35, 3, s39")
    A("v_mov_b32 v28, s50")
    A("v_mov_b32 v29, s51")
    A("s_lshr_b32 s38, s26, 3")
    A("s_lshl_b32 s38, s38, 20")
    A("s_and_b32 s39, s26, 7")
    A("s_lshl_b32 s39, s39, 16")
    A("s_add_u32 s38, s38, s39")
    A("s_lshl_b32 s39, s25, 7")
    A("s_add_u32 s38, s38, s39")
    A("s_add_u32 s53, s38, 1024")
    A("s_lshl_b32 s39, s30, 19")
    A("s_add_u32 s38, s53, s39")
    A("s_lshl_b32 s39, s29, 15")
    A("s_add_u32 s38, s38, s39")
    A("v_lshrrev_b32 v4, 3, v1")
    A("v_lshlrev_b32 v4, 11, v4")
    A("v_and_b32 v5, 7, v1")
    A("v_lshl_add_u32 v4, v5, 4, v4")
    A("v_add_u32 v4, s38, v4")
    A("v_add_u32 v17, 0x4000, v4")
    A("s_add_u32 s52, s33, 4096")
    A("v_lshrrev_b32 v5, 3, v1")
    A("v_mul_u32_u24 v5, 144, v5")
    A("v_and_b32 v6, 7, v1")
    A("v_lshl_add_u32 v5, v6, 4, v5")
    A("v_add_u32 v5, s52, v5")
    A("v_lshl_add_u32 v6, v24, 3, v38")
    A("v_mul_u32_u24 v6, 144, v6")
    A("v_lshl_add_u32 v7, v39, 2, v37")
    A("v_lshl_add_u32 v6, v7, 3, v6")
    A("v_add_u32 v6, s52, v6")
    A("s_lshl_b32 s39, s24, 5")
    A("s_add_u32 s38, s53, s39")
    A("v_and_b32 v7, 1, v38")
    A("v_lshlrev_b32 v7, 8, v7")
    A("v_lshl_add_u32 v7, v39, 3, v7")
    A("v_lshrrev_b32 v16, 1, v38")
    A("v_lshl_add_u32 v7, v16, 2, v7")
    A("v_add_u32 v7, v7, v37")
    A("v_lshlrev_b32 v7, 11, v7")
    A("v_lshl_add_u32 v7, v24, 4, v7")
    A("v_add_u32 v7, s38, v7")
    A("v_add_u32 v16, 0x8000, v7")
    stamp()
    A("s_waitcnt vmcnt(0)")
    A("s_mov_b64 exec, 1")
    moded(["global_store_dwordx2 v2, v[28:29], s[42:43]"])
    A("s_mov_b64 exec, -1")
    A("s_mov_b32 s49, 0x40000")
    lf = a.newlabel("By"); lfd = a.newlabel("Bydone")
    a.label(lf)
    A("global_load_dwordx2 v[18:19], v3, s[42:43] sc1")
    A("s_waitcnt vmcnt(0)")
    A("v_cmp_ne_u64 vcc, s[50:51], v[18:19]")
    A(f"s_cbranch_vccz {lfd}")
    A("s_sub_u32 s49, s49, 1")
    A(f"s_cbranch_scc1 {lfd}")
    if ysleep: A(f"s_sleep {ysleep}")
    A(f"s_branch {lf}")
    a.label(lfd)
    stamp()
    A("global_load_dwordx4 v[8:11], v4, s[22:23] sc1")
    A("global_load_dwordx4 v[12:15], v17, s[22:23] sc1")
    for q in range(2):
        A(f"s_waitcnt vmcnt({1-q})")
        A(f"ds_write_b128 v5, v[{8+4*q}:{11+4*q}] offset:{8*144*q}")
    A("s_waitcnt lgkmcnt(0)")
    for q in range(2):
        for sec in range(2):
            A(f"ds_read_b64_tr_b16 v[{96+4*q+2*sec}:{97+4*q+2*sec}], v6 offset:{4*144*sec+64*q}")
    A("s_barrier")
    for q in range(2):
        A(f"s_waitcnt lgkmcnt({2-2*q})")
        A(f"global_store_dwordx4 v{7 if q == 0 else 16}, v[{96+4*q}:{99+4*q}], s[22:23] {outmod}")
    if stamps:
        stamp()
        A("s_waitcnt vmcnt(0)")
        stamp()
        n = nst[0]
        print("B stamps", n)
        assert n <= 15
        A("s_waitcnt lgkmcnt(0)")
        A("s_lshl_b32 s38, s36, 7")
        A(f"s_add_u32 s38, s38, {stamps}")
        A("v_mov_b32 v2, s38")
        for i in range(n):
            A(f"v_mov_b32 v4, s{64+2*i}")
            A(f"v_mov_b32 v5, s{65+2*i}")
            A(f"global_store_dwordx2 v2, v[4:5], s[42:43] offset:{8*i}")
        A("s_waitcnt vmcnt(0)")
    A("s_endpgm")
    ool()
```

```python
import sys
from asmlib import *
import genA7, genB7
STA, STB = 0x700000, 0x780000
def build(path, stamps=False, noA=False, noB=False, bfirst=True, **kw):
    a = Asm()
    def nonce_only():
        a("s_cmp_lg_u32 s2, 0"); a("s_cbranch_scc1 .Lexit")
        a("s_load_dwordx2 s[16:17], s[0:1], 112"); a("s_memrealtime s[70:71]"); a("s_waitcnt lgkmcnt(0)")
        a("s_or_b32 s70, s70, 1"); a("s_bitset1_b32 s71, 31"); a("v_mov_b32 v125, 0"); a("v_mov_b32 v126, s70"); a("v_mov_b32 v127, s71"); a("v_cmp_eq_u32 vcc, 0, v0"); a("s_and_saveexec_b64 s[4:5], vcc")
        a("global_store_dwordx2 v125, v[126:127], s[16:17] sc1"); a("s_endpgm")
    def eA(first):
        if noA:
            if first: nonce_only()
            else: a("s_endpgm")
        else: genA7.emit_A(a, stamps=(STA if stamps else None), nonce=first, **kw.get("A", {}))
    def eB(first):
        if noB:
            if first: nonce_only()
            else: a("s_endpgm")
        else: genB7.emit_B(a, stamps=(STB if stamps else None), nonce=first, **kw.get("B", {}))
    a("s_cmp_ge_u32 s2, 256")
    a("s_cbranch_scc1 .LB")
    (eB if bfirst else eA)(True)
    a.label(".LB")
    a("s_cmp_ge_u32 s2, 512")
    a("s_cbranch_scc1 .Lexit")
    a("s_sub_u32 s2, s2, 256")
    (eA if bfirst else eB)(False)
    a.label(".Lexit")
    a("s_endpgm")
    k = kernel_text(NAME + "_kernel", a.text(), vgpr=256, sgpr=102)
    hdr = "".join(l for l in open("cdna_kernels/" + NAME + ".s.ref") if l.startswith(";") and "@launch" not in l)
    open(path, "w").write(file_text([(None, 512, 256, 81920)], [k], header=hdr))
if __name__ == "__main__":
    kw = dict(A=dict(prio=3, wo2n=4), bfirst=False)
    build("k7.s", **kw)
    build("tF7.s", stamps=True, **kw)
    build("tS7.s", stamps=True, bfirst=False, A=dict(prio=3, force_slow=True), B=dict(force_slow=True))
    build("k7p.s", A=dict(prio=3, wo2n=4, pf=16), bfirst=False)
    build("k7n.s", A=dict(prio=3, wo2n=4, outmod="nt"), B=dict(outmod="nt"), bfirst=False)
    build("k7b.s", A=dict(prio=3, wo2n=4), bfirst=True)
    build("k7c.s", A=dict(prio=3, wo2n=4), B=dict(i1=60, i2=150), bfirst=False)
    build("k7d.s", A=dict(prio=3, wo2n=4), B=dict(prio2=3), bfirst=False)
    build("k7e.s", A=dict(prio=1, wo2n=4), B=dict(prio=2), bfirst=False)
```

```python
import struct, math
from asmlib import *

def f32bits(x): return struct.unpack("<I", struct.pack("<f", x))[0]
LOG2E = f32bits(math.log2(math.e))

from genB7 import KVOFF, OOFF, F1OFF, F2OFF, F3OFF
S0, S1, S2 = 32768, 49152, 65536
PVB = 0
PVS = 224
KVI = S2
KVS = 80

class VM:
    def __init__(self, A): self.A = A; self.ops = []
    def issue(self, tag, ins):
        self.A(ins); self.ops.append(tag)
    def cnt(self, tag):
        idx = max(i for i, t in enumerate(self.ops) if t == tag)
        n = len(self.ops) - 1 - idx
        assert n <= 63
        return n
    def wait(self, tag, extra=""):
        self.A(f"s_waitcnt vmcnt({self.cnt(tag)}){extra}")
    def drain(self):
        self.A("s_waitcnt vmcnt(0)"); self.ops = []

def softmax_stream(P, EN, OUT, T, sL, pk=False):
    mx, mn, t0, t1, s0, s1 = T
    H = []
    H.append(f"v_max3_f32 v{mx}, v{P}, v{P+1}, v{P+2}")
    H.append(f"v_min3_f32 v{mn}, v{P}, v{P+1}, v{P+2}")
    H.append(f"v_max3_f32 v{t0}, v{P+3}, v{P+4}, v{P+5}")
    H.append(f"v_min3_f32 v{t1}, v{P+3}, v{P+4}, v{P+5}")
    for i in (6, 10):
        H.append(f"v_max3_f32 v{mx}, v{mx}, v{P+i}, v{P+i+1}")
        H.append(f"v_min3_f32 v{mn}, v{mn}, v{P+i}, v{P+i+1}")
        H.append(f"v_max3_f32 v{t0}, v{t0}, v{P+i+2}, v{P+i+3}")
        H.append(f"v_min3_f32 v{t1}, v{t1}, v{P+i+2}, v{P+i+3}")
    H.append(f"v_max3_f32 v{mx}, v{mx}, v{P+14}, v{P+15}")
    H.append(f"v_min3_f32 v{mn}, v{mn}, v{P+14}, v{P+15}")
    H.append(f"v_max_f32 v{mx}, v{mx}, v{t0}")
    H.append(f"v_min_f32 v{mn}, v{mn}, v{t1}")
    H.append(f"v_mul_f32_e64 v{mx}, -v{mx}, {sL}")
    H.append(f"v_mul_f32 v{mn}, {sL}, v{mn}")
    B = []
    for i in range(16):
        B.append(f"v_fma_f32 v{EN+i}, -v{P+i}, {sL}, v{mn}")
        B.append(f"v_fma_f32 v{P+i}, v{P+i}, {sL}, v{mx}")
        if i >= 1:
            B.append(f"v_exp_f32 v{EN+i-1}, v{EN+i-1}")
            B.append(f"v_exp_f32 v{P+i-1}, v{P+i-1}")
        if i >= 3:
            j = i - 2
            if j == 1:
                B.append(f"v_add_f32 v{s0}, v{P}, v{P+1}")
                B.append(f"v_add_f32 v{s1}, v{EN}, v{EN+1}")
            else:
                B.append(f"v_add_f32 v{s0}, v{s0}, v{P+j}")
                B.append(f"v_add_f32 v{s1}, v{s1}, v{EN+j}")
    B.append(f"v_exp_f32 v{EN+15}, v{EN+15}")
    B.append(f"v_exp_f32 v{P+15}, v{P+15}")
    B.append(f"v_add_f32 v{s0}, v{s0}, v{P+14}")
    B.append(f"v_add_f32 v{s1}, v{s1}, v{EN+14}")
    B.append(f"v_add_f32 v{s1}, v{s1}, v{EN+15}")
    B.append(f"v_add_f32 v{s0}, v{s0}, v{P+15}")
    B.append(f"v_rcp_f32 v{s1}, v{s1}")
    B.append(f"v_rcp_f32 v{s0}, v{s0}")
    Tl = []
    for h, s, E in ((1, s1, EN), (0, s0, P)):
        for i in range(0, 16, 2):
            a, b = E+i, E+i+1
            Tl.append(f"v_mul_f32 v{a}, v{a}, v{s}")
            Tl.append(f"v_mul_f32 v{b}, v{b}, v{s}")
            Tl.append(f"v_cvt_pk_bf16_f32 v{OUT[8*h+i//2]}, v{a}, v{b}")
    return H, B, Tl

def cost(ins):
    return 8 if ins.startswith(("v_exp", "v_rcp")) else 4

def interleave(A, valu, items, budget):
    vi = 0
    for it in items:
        for l in it: A(l)
        c = 0
        while vi < len(valu) and c + cost(valu[vi]) <= budget:
            A(valu[vi]); c += cost(valu[vi]); vi += 1
    return valu[vi:]

def emit_A(a, stamps=None, prio=None, bud=16, clr_i=4, force_slow=False, outmod='', kap=0, skip=(2, 5), tstr=17408, D=7, nonce=True, sp1=40, sp2=4, sp3=12, wva5=4, h1sp=3, vb=13, pf=0, fsti=None, wo2n=8, h1w=True, tlb=0, pfl=0, non_i=4, split=0, nqa=0):
    A = a
    nst = [0]
    def stamp(idn=None):
        if stamps and idn not in skip:
            i = nst[0]; nst[0] += 1
            A(f"s_memtime s[{streg(i)}:{streg(i)+1}]")
    def streg(i): return 80+2*i if i < 10 else 20+2*(i-10)
    stamp(0)
    if prio is not None: A(f"s_setprio {prio}")
    A("s_load_dwordx8 s[4:11], s[0:1], 0")
    A("s_load_dwordx2 s[12:13], s[0:1], 104")
    A("s_load_dwordx4 s[16:19], s[0:1], 112")
    A("s_memrealtime s[70:71]")
    A("v_and_b32 v1, 63, v0")
    A("v_lshrrev_b32 v2, 6, v0")
    A("s_and_b32 s40, s2, 7")
    A("s_lshr_b32 s41, s2, 3")
    A("v_readfirstlane_b32 s36, v2")
    A("s_getreg_b32 s3, hwreg(HW_REG_XCC_ID, 0, 4)")
    A("s_and_b32 s42, s41, 1")
    A("s_lshl_b32 s37, s40, 1")
    A("s_add_u32 s37, s37, s42")
    A("s_lshr_b32 s38, s41, 1")
    if kap == 0:
        A("s_lshl_b32 s39, s42, 2")
        A("s_add_u32 s39, s39, s38")
    elif kap == 1:
        A("s_lshr_b32 s39, s41, 2")
    elif kap == 2:
        A("s_mov_b32 s39, s41")
    else:
        A("s_lshl_b32 s39, s42, 2")
        A("s_and_b32 s14, s38, 1"); A("s_lshl_b32 s14, s14, 1"); A("s_add_u32 s39, s39, s14")
        A("s_bfe_u32 s14, s38, 0x10001"); A("s_add_u32 s39, s39, s14")
        A("s_and_b32 s14, s38, 4"); A("s_add_u32 s39, s39, s14")
        if kap == 4: A("s_add_u32 s39, s39, s40")
    A("s_and_b32 s42, s41, 3")
    A("s_lshl_b32 s14, s40, 2")
    A("s_add_u32 s14, s14, s42")
    A("s_lshr_b32 s15, s41, 2")
    A("s_lshl_b32 s3, s3, 27")
    A("v_lshrrev_b32 v21, 3, v1")
    A("v_lshrrev_b32 v22, 4, v1")
    A("v_and_b32 v23, 3, v1")
    A("v_bfe_u32 v24, v1, 2, 2")
    A("v_lshrrev_b32 v25, 5, v1")
    A("v_and_b32 v26, 31, v1")
    A("v_and_b32 v27, 15, v1")
    A("s_lshl_b32 s40, s38, 10")
    A("v_lshl_add_u32 v29, v1, 4, s40")
    A("s_mul_i32 s40, s36, %d" % (16*3072))
    A("s_lshl_b32 s41, s38, 6")
    A("s_add_u32 s40, s40, s41")
    A("v_lshrrev_b32 v28, 2, v1")
    A("v_mul_u32_u24 v4, 3072, v28")
    A("v_lshl_add_u32 v4, v23, 4, v4")
    A("v_add_u32 v4, s40, v4")
    A("s_lshl_b32 s40, s37, 17")
    A("s_lshl_b32 s41, s36, 15")
    A("s_add_u32 s40, s40, s41")
    A("v_and_b32 v28, 7, v1")
    A("v_xor_b32 v28, v28, v22")
    A("v_lshlrev_b32 v2, 10, v21")
    A("v_lshl_add_u32 v2, v28, 4, v2")
    A("v_add_u32 v2, s40, v2")
    A("v_xor_b32 v3, 64, v2")
    A("s_lshl_b32 s44, s36, 12")
    A("s_lshl_b32 s45, s36, 10")
    for i in range(8):
        A(f"s_add_u32 s40, s39, {i}")
        A("s_and_b32 s40, s40, 7")
        A(f"s_lshl_b32 s{52+i}, s40, 7")
        A(f"s_mul_i32 s{60+i}, s40, {64*3072}")
    A("s_waitcnt lgkmcnt(0)")
    for (d, p, n) in ((20, 4, 2048*1024), (24, 6, 512*3072), (28, 10, 512*1024), (32, 8, 32*512)):
        A(f"s_mov_b32 s{d}, s{p}")
        A(f"s_mov_b32 s{d+1}, s{p+1}")
        A(f"s_mov_b32 s{d+2}, {n}")
        A(f"s_mov_b32 s{d+3}, 0x00020000")
    lnn = a.newlabel("Anon")
    A("s_or_b32 s40, s2, s36")
    A(f"s_cbranch_scc1 {lnn}" if nonce else f"s_branch {lnn}")
    A("s_or_b32 s70, s70, 1")
    A("s_bitset1_b32 s71, 31")
    A("v_mov_b32 v125, 0")
    A("v_mov_b32 v126, s70")
    A("v_mov_b32 v127, s71")
    A("s_mov_b64 exec, 1")
    A("global_store_dwordx2 v125, v[126:127], s[16:17] sc1")
    A("s_mov_b64 exec, -1")
    a.label(lnn)
    vm = VM(A)
    if pf:
        lpf = a.newlabel("Apf")
        A(f"s_cmp_ge_u32 s2, {pf}")
        A(f"s_cbranch_scc1 {lpf}")
        A("s_getpc_b64 s[72:73]")
        a.label(".Lpc0")
        A("v_lshlrev_b32 v125, 7, v0")
        A("v_min_u32 v125, .Lexit-.Lpc0, v125")
        A("global_load_dword v126, v125, s[72:73]")
        a.label(lpf)
    A(f"s_add_u32 m0, s44, {S2}")
    vm.issue("wphi", "buffer_load_dwordx4 v29, s[32:35], 0 offen lds")
    X = 128
    SL = [S0, S1, S2]
    def xdma(i):
        for j in range(4):
            A(f"s_add_u32 m0, s44, {SL[i%3]+1024*j}")
            if j: A(f"s_add_u32 s{52+i}, s{52+i}, 8192")
            vm.issue(f"x{i}", f"buffer_load_dwordx4 v{2+(j&1)}, s[20:23], s{52+i} offen lds")
    def wdma(tag, i, mat, m0base, m0off):
        A(f"s_add_u32 m0, {m0base}, {m0off}")
        A(f"s_add_u32 s41, s{60+i}, {1024*mat}")
        vm.issue(tag, "buffer_load_dwordx4 v4, s[24:27], s41 offen lds")
    class L:
        def __init__(s_, f): s_.f = f
    def emit(x):
        if isinstance(x, L): x.f()
        else: A(x)
    def sprinkle(st, loads, first, sp):
        out = []; k = 0
        for n, l in enumerate(st):
            if k < len(loads) and n >= first + k*sp: out.append(loads[k]); k += 1
            out.append(l)
        return out + loads[k:]
    if split:
        for i in range(split): wdma("wk", i, 1, "s45", 4096*i)
        xdma(0)
        xdma(1)
        for i in range(split, 8): wdma("wk2", i, 1, "s45", 4096*i)
    else:
        for i in range(2): wdma("wk", i, 1, "s45", 4096*i)
        xdma(0)
        for i in range(2, 8): wdma("wk", i, 1, "s45", 4096*i)
        xdma(1)
    A("v_bfe_u32 v28, v26, 1, 3")
    A("v_xor_b32 v28, v28, v25")
    A("v_lshlrev_b32 v6, 7, v26")
    A("v_lshl_add_u32 v6, v28, 4, v6")
    A(f"s_add_u32 s40, s44, {S0}")
    A("v_add_u32 v6, s40, v6")
    for t in range(1, 4): A(f"v_xor_b32 v{6+t}, {32*t}, v6")
    A("v_and_b32 v28, 1, v23")
    A("v_lshlrev_b32 v30, 5, v28")
    A("v_and_b32 v31, 1, v22")
    A("v_lshl_add_u32 v30, v31, 4, v30")
    A("v_lshrrev_b32 v5, 1, v23")
    A("v_lshl_add_u32 v30, v5, 3, v30")
    A("v_lshlrev_b32 v29, 9, v28")
    A("v_lshl_add_u32 v29, v24, 5, v29")
    A("v_lshl_add_u32 v29, v31, 4, v29")
    A("v_lshl_add_u32 v29, v5, 3, v29")
    A(f"s_add_u32 s40, s44, {S2}")
    A("v_add_u32 v29, s40, v29")
    A("v_lshl_add_u32 v31, v25, 3, v24")
    A("v_lshl_add_u32 v10, v31, 6, v30")
    A(f"v_add_u32 v11, {S0}, v10")
    A("v_bfe_u32 v28, v1, 2, 1")
    A("v_cmp_eq_u32_e64 s[46:47], v28, v25")
    WP = 96
    vm.wait("wphi")
    for t in range(2):
        for sec in range(2):
            A(f"ds_read_b64_tr_b16 v[{WP+4*t+2*sec}:{WP+4*t+2*sec+1}], v29 offset:{256*t+128*sec}")
    A("s_mul_i32 s40, s36, %d" % (32*PVS))
    A(f"v_mul_u32_u24 v16, {PVS}, v26")
    A("v_add_u32 v16, s40, v16")
    A("v_lshl_add_u32 v15, v25, 6, v16")
    A("v_lshl_add_u32 v16, v25, 5, v16")
    A("v_add_u32 v16, 128, v16")
    A(f"s_mov_b32 s48, 0x{LOG2E:08x}")
    A("s_waitcnt lgkmcnt(0)")
    xdma(2)
    for q in range(8):
        A(f"v_cndmask_b32_e64 v{WP+q}, 0, v{WP+q}, s[46:47]")
    A("s_lshl_b32 s40, s15, 7")
    A("v_and_b32 v28, 1, v22")
    A("v_and_b32 v29, 7, v1")
    A("v_xor_b32 v28, v28, v29")
    A("v_lshlrev_b32 v12, 10, v21")
    A("v_lshl_add_u32 v12, v28, 4, v12")
    A("v_add_u32 v12, s40, v12")
    A("v_xor_b32 v13, 64, v12")
    A(f"s_mul_i32 s40, s37, {8*tstr}")
    A(f"s_mul_i32 s41, s36, {2*tstr}")
    A("s_add_u32 s40, s40, s41")
    A("s_lshl_b32 s41, s38, 10")
    A("s_add_u32 s40, s40, s41")
    A(f"s_add_u32 s40, s40, {OOFF}")
    A("v_and_b32 v14, 1, v22")
    A(f"v_mul_u32_u24 v14, {tstr}, v14")
    A("v_lshl_add_u32 v14, v25, 9, v14")
    A("v_lshl_add_u32 v14, v27, 4, v14")
    A("v_add_u32 v14, s40, v14")
    A("v_lshl_add_u32 v28, v22, 2, v24")
    A(f"v_mul_u32_u24 v17, {PVS}, v28")
    A("v_lshl_add_u32 v17, v23, 3, v17")
    A("s_lshr_b32 s40, s36, 1")
    A("s_lshl_b32 s41, s40, 5")
    A(f"s_add_u32 s41, s41, {PVB+128}")
    A("v_add_u32 v18, s41, v17")
    A("s_lshl_b32 s41, s36, 5")
    A("v_add_u32 v17, s41, v17")
    A("s_and_b32 s41, s36, 1")
    A("s_lshl_b32 s41, s41, 1")
    A("s_lshl_b32 s42, s38, 2")
    A("s_add_u32 s41, s41, s42")
    A("s_mul_i32 s41, s41, 12288")
    A("s_lshl_b32 s42, s37, 8")
    A("s_add_u32 s41, s41, s42")
    A(f"s_add_u32 s41, s41, {KVOFF}")
    A("s_lshl_b32 s42, s40, 12")
    A("s_add_u32 s42, s42, s41")
    A("s_add_u32 s41, s41, 8192")
    A("v_mul_u32_u24 v19, 12288, v25")
    A("v_lshl_add_u32 v19, v27, 4, v19")
    A("v_and_b32 v28, 1, v22")
    A("v_lshl_add_u32 v19, v28, 3, v19")
    A("v_add_u32 v20, s41, v19")
    A("v_add_u32 v19, s42, v19")
    A("v_and_b32 v28, 1, v1")
    A("v_cmp_eq_u32_e64 s[50:51], s40, v28")
    A("s_lshl_b32 s40, s37, 2")
    A("s_add_u32 s40, s40, s36")
    A("s_lshl_b32 s41, s40, 3")
    A("s_lshl_b32 s42, s38, 9")
    A("s_add_u32 s41, s41, s42")
    A(f"s_add_u32 s41, s41, {F1OFF}")
    A("s_lshl_b32 s40, s40, 7")
    A("s_lshl_b32 s42, s38, 3")
    A("s_add_u32 s40, s40, s42")
    A(f"s_add_u32 s8, s40, {F2OFF}")
    A("s_and_b32 s40, s2, 7")
    A("s_lshl_b32 s40, s40, 10")
    A("s_lshl_b32 s42, s36, 8")
    A("s_add_u32 s40, s40, s42")
    A(f"s_add_u32 s9, s40, {F3OFF}")
    A("s_and_b32 s42, s2, 0xf8")
    A("s_add_u32 s40, s9, s42")
    A("v_mov_b32 v5, s41")
    A("v_writelane_b32 v5, s40, 1")
    A("v_mov_b32 v21, 0")
    for q in range(4): A(f"v_mov_b32 v{120+q}, -1")
    AK, AV, EN, WF, WQH = 32, 48, 64, 80, 104
    T = [120, 121, 122, 123, 124, 125]
    def clr():
        vm.issue("clr", "global_store_dwordx2 v19, v[120:121], s[18:19] sc1")
        A("s_mov_b64 exec, s[50:51]")
        vm.issue("clr", "global_store_dwordx2 v20, v[120:121], s[18:19] sc1")
        A("s_mov_b64 exec, -1")
    if clr_i < 0: clr()
    vm.wait("wk")
    A("s_barrier")
    stamp(1)
    for i in range(8):
        wb = EN if (i & 1) else WF
        if split and i == split:
            vm.wait("wk2")
            A("s_barrier")
        for t in range(4):
            for sec in range(2):
                b = wb + 4*t + 2*sec
                A(f"ds_read_b64_tr_b16 v[{b}:{b+1}], v10 offset:{4096*i+1024*t+256*sec}")
        vm.wait(f"x{i}")
        if i in (0, 7): stamp(2)
        for t in range(4):
            A(f"ds_read_b128 v[{X+16*i+4*t}:{X+16*i+4*t+3}], v{6+t} offset:{SL[i%3]-S0}")
        def mf():
            for t in range(4):
                b = wb + 4*t
                A(f"s_waitcnt lgkmcnt({3-t})")
                cin = "0" if (i == 0 and t == 0) else f"v[{AK}:{AK+15}]"
                A(f"v_mfma_f32_32x32x16_bf16 v[{AK}:{AK+15}], v[{b}:{b+3}], v[{X+16*i+4*t}:{X+16*i+4*t+3}], {cin}")
        mf()
        if i <= 4: xdma(i+3)
        if i == clr_i: clr()
        if i == non_i:
            vm.issue("clr", "global_load_dwordx2 v[28:29], v21, s[16:17]")
            if tlb:
                vm.issue("clr", "buffer_load_dword v31, v21, s[28:31], 0 offen")
        if i <= 4: pass
        elif i == 5:
            for q in range(wva5): wdma("wva", q, 2, "s44", S2+1024*q)
        elif i == 6:
            for q in range(wva5, 4): wdma("wva", q, 2, "s44", S2+1024*q)
    for q in range(8):
        A(f"v_cvt_pk_bf16_f32 v{120+q}, v{AK+2*q}, v{AK+2*q+1}")
    A(f"v_mfma_f32_32x32x16_bf16 v[{AK}:{AK+15}], v[{WP}:{WP+3}], v[120:123], 0")
    A(f"v_mfma_f32_32x32x16_bf16 v[{AK}:{AK+15}], v[{WP+4}:{WP+7}], v[124:127], v[{AK}:{AK+15}]")
    wdma("wvb", 4, 2, "s44", S0)
    stamp(3)
    OUT = [AK+q for q in range(8)] + [EN+q for q in range(8)]
    H, B, Tl = softmax_stream(AK, EN, OUT, T, "s48")
    lvb = [L(lambda q=q: wdma("wvb", 4+q, 2, "s44", S0+1024*q)) for q in range(1, 4)]
    lqa = [L(lambda q=q: wdma("wqa", q, 0, "s44", S1+1024*q)) for q in range(4)]
    lqb = [L(lambda q=q: vm.issue("wqb", f"buffer_load_dwordx4 v[{WQH+4*q}:{WQH+4*q+3}], v4, s[24:27], s{64+q} offen")) for q in range(4)]
    lvb = lvb + lqa[:nqa]; lqa = lqa[nqa:]
    for l in sprinkle(H + B[:sp1], lvb, 14 if nqa == 0 else 6, sp3): emit(l)
    B = B[sp1:]
    def vaddr(i, t, sec):
        base = (S2 if i < 4 else S0) - S0
        return base + 4096*t + 1024*(i & 3) + 256*sec
    def vreads(n):
        i, t = n >> 2, n & 3
        b = WF + 4*(n & 3)
        return [f"ds_read_b64_tr_b16 v[{b+2*sec}:{b+2*sec+1}], v11 offset:{vaddr(i, t, sec)}" for sec in range(2)]
    def vitems(lo, hi):
        items = []
        pre = vreads(lo) + vreads(lo+1) + vreads(lo+2)
        items.append(pre)
        for n in range(lo, hi):
            i, t = n >> 2, n & 3
            b = WF + 4*(n & 3)
            it = []
            left = min(hi-1, n+2) - n
            it.append(f"s_waitcnt lgkmcnt({2*left})")
            cin = "0" if n == 0 else f"v[{AV}:{AV+15}]"
            it.append(f"v_mfma_f32_32x32x16_bf16 v[{AV}:{AV+15}], v[{b}:{b+3}], v[{X+16*i+4*t}:{X+16*i+4*t+3}], {cin}")
            if n + 3 < hi: it += vreads(n+3)
            items.append(it)
        return items
    vm.wait("wva")
    A("v_readfirstlane_b32 s4, v28")
    A("v_readfirstlane_b32 s5, v29")
    A("s_mov_b32 s77, 0x40000")
    ln = a.newlabel("Anonce"); lnd = a.newlabel("Anonced")
    a.label(ln)
    A("s_min_u32 s40, s4, s5")
    A("s_cmp_lg_u32 s40, 0")
    A(f"s_cbranch_scc1 {lnd}")
    A("s_sub_u32 s77, s77, 1")
    A(f"s_cbranch_scc1 {lnd}")
    A("global_load_dwordx2 v[28:29], v21, s[16:17] sc1")
    A("s_waitcnt vmcnt(0)")
    A("v_readfirstlane_b32 s4, v28")
    A("v_readfirstlane_b32 s5, v29")
    A(f"s_branch {ln}")
    a.label(lnd)
    A("s_or_b32 s7, s5, s3")
    A("s_mov_b32 s6, s4")
    A("v_writelane_b32 v29, s7, 1")
    def fst():
        A("s_mov_b64 exec, 3")
        vm.issue("fst", "global_store_dwordx2 v5, v[28:29], s[18:19] sc1")
        A("s_mov_b64 exec, -1")
    if fsti is None: fst()
    A("s_barrier")
    stamp(4)
    def addl(items, loads, first, sp):
        for k, l in enumerate(loads): items[first + k*sp].append(l)
        return items
    its = vitems(0, 32)
    its[vb] += [L(lambda: vm.wait("wvb")), "s_barrier"]
    assert vb <= 13
    addl(its, lqa + lqb, 1, sp2)
    if fsti is not None: its[fsti].append(L(fst))
    rest = interleave(emit, B + Tl, its, bud)
    for l in rest: A(l)
    for q in range(2):
        A(f"ds_write_b128 v15, v[{EN+4*q}:{EN+4*q+3}] offset:{32+16*q}")
    for q in range(2):
        A(f"ds_write_b128 v15, v[{AK+4*q}:{AK+4*q+3}] offset:{16*q}")
    for q in range(8):
        A(f"v_cvt_pk_bf16_f32 v{WF+q}, v{AV+2*q}, v{AV+2*q+1}")
        if q == 3: A(f"ds_write_b128 v16, v[{WF}:{WF+3}]")
    A(f"ds_write_b128 v16, v[{WF+4}:{WF+7}] offset:16")
    for q in range(4): A(f"v_mov_b32 v{120+q}, 0x3f803f80")
    stamp(5)
    A("s_lshl_b32 s40, s38, 9")
    A(f"s_add_u32 s40, s40, {F1OFF}")
    A("v_lshl_add_u32 v5, v1, 3, s40")
    A("v_lshl_add_u32 v8, v26, 3, s9")
    vm.wait("wqa", " lgkmcnt(0)")
    A("s_barrier")
    stamp(6)
    WB = 64
    for u in range(4):
        for op, vr in ((0, 17), (1, 18)):
            for sec in range(2):
                b = WB + 8*u + 4*op + 2*sec
                A(f"ds_read_b64_tr_b16 v[{b}:{b+1}], v{vr} offset:{32*PVS*u+16*PVS*sec}")
    for u in range(4):
        b = WB + 8*u
        A(f"s_waitcnt lgkmcnt({14-4*u})")
        A(f"v_mfma_f32_16x16x32_bf16 v[{AK+4}:{AK+7}], v[{b}:{b+3}], v[120:123], {'0' if u == 0 else f'v[{AK+4}:{AK+7}]'}")
        A(f"s_waitcnt lgkmcnt({12-4*u})")
        A(f"v_mfma_f32_16x16x32_bf16 v[{AK}:{AK+3}], v[{b}:{b+3}], v[{b+4}:{b+7}], {'0' if u == 0 else f'v[{AK}:{AK+3}]'}")
    A(f"s_add_u32 s40, s44, {S2}")
    A("v_lshl_add_u32 v30, v1, 4, s40")
    A(f"v_cvt_pk_bf16_f32 v{AV+2}, v{AK+4}, v{AK+5}")
    A(f"v_cvt_pk_bf16_f32 v{AV+3}, v{AK+6}, v{AK+7}")
    A(f"v_cvt_pk_bf16_f32 v{AV}, v{AK}, v{AK+1}")
    A(f"v_cvt_pk_bf16_f32 v{AV+1}, v{AK+2}, v{AK+3}")
    for q in (2, 3, 0, 1): A(f"v_min_u32 v{AV+q}, -2, v{AV+q}")
    vm.issue("pub", f"global_store_dwordx2 v19, v[{AV}:{AV+1}], s[18:19] sc1")
    A("s_mov_b64 exec, s[50:51]")
    vm.issue("pub", f"global_store_dwordx2 v20, v[{AV+2}:{AV+3}], s[18:19] sc1")
    A("s_mov_b64 exec, -1")
    vm.issue("flag", "global_load_dwordx2 v[28:29], v5, s[18:19] sc1")
    if pfl & 1:
        A("s_lshl_b32 s40, s14, 8")
        A("s_lshr_b32 s41, s36, 1")
        A("s_lshl_b32 s41, s41, 7")
        A("s_add_u32 s40, s40, s41")
        A(f"s_add_u32 s40, s40, {F2OFF}")
        A("v_mov_b32 v9, s40")
        vm.issue("pfl", "global_load_dword v31, v9, s[18:19]")
    if pfl & 2:
        vm.issue("pfl", "global_load_dword v31, v14, s[18:19]")
        vm.issue("pfl", "global_load_dword v31, v14, s[18:19] offset:256")
    stamp(7)
    vm.wait("wqb")
    for j in range(4):
        A(f"ds_write_b128 v30, v[{WQH+4*j}:{WQH+4*j+3}] offset:{1024*j}")
    def wodma(g0, n, tag):
        def one(q):
            if q == 0:
                A(f"s_mul_i32 s72, s36, {n}")
                A(f"s_add_u32 s72, s72, {g0}")
                A("s_lshl_b32 s73, s72, 13")
                A("s_lshl_b32 s72, s72, 10")
            A(f"s_add_u32 m0, s72, {1024*q}")
            vm.issue(tag, f"buffer_load_dwordx4 v{12+(q&1)}, s[28:31], s73 offen lds")
            if q < n-1: A("s_add_u32 s73, s73, 8192")
        return [L(lambda q=q: one(q)) for q in range(n)]
    def qreads(i):
        L = []
        base = (S1 if i < 4 else S2) - S0
        for t in range(4):
            for sec in range(2):
                b = WB + 16*(i & 1) + 4*t + 2*sec
                L.append(f"ds_read_b64_tr_b16 v[{b}:{b+1}], v11 offset:{base+4096*t+1024*(i&3)+256*sec}")
        return L
    for half in range(2):
        if half == 1:
            A("s_barrier")
            for l in qreads(4): A(l)
            wl = wodma(0, 8, "wo2")
            wl, wl2 = wl[:wo2n], wl[wo2n:]
        else:
            for l in qreads(0): A(l)
            wl = wodma(32, 4, "wo1")
        if wl: emit(wl.pop(0))
        for i in range(4*half, 4*half+4):
            nxt = qreads(i+1) if (i & 3) < 3 else []
            for t in range(4):
                b = WB + 16*(i & 1) + 4*t
                if nxt:
                    A(nxt[2*t]); A(nxt[2*t+1])
                    A(f"s_waitcnt lgkmcnt({8})")
                else:
                    A(f"s_waitcnt lgkmcnt({6-2*t})")
                cin = "0" if (i == 0 and t == 0) else f"v[{AK}:{AK+15}]"
                A(f"v_mfma_f32_32x32x16_bf16 v[{AK}:{AK+15}], v[{b}:{b+3}], v[{X+16*i+4*t}:{X+16*i+4*t+3}], {cin}")
                if wl and (t == 2 or (half == 1 and t == 0)): emit(wl.pop(0))
        assert not wl
    A("s_barrier")
    stamp(8)
    A("s_mov_b32 s77, 0x40000")
    vm.wait("flag")
    lf = a.newlabel("Aflag"); lfd = a.newlabel("Aflagdone")
    a.label(lf)
    A("v_cmp_ne_u64 vcc, s[4:5], v[28:29]")
    A(f"s_cbranch_vccz {lfd}")
    A("s_sub_u32 s77, s77, 1")
    A(f"s_cbranch_scc1 {lfd}")
    A("s_sleep 4")
    A("global_load_dwordx2 v[28:29], v5, s[18:19] sc1")
    A("s_waitcnt vmcnt(0)")
    A(f"s_branch {lf}")
    a.label(lfd)
    A("s_lshl_b32 s40, s38, 2")
    A("s_add_u32 s40, s40, s36")
    A("s_mul_i32 s40, s40, 12288")
    A(f"s_add_u32 s40, s40, {KVOFF}")
    A("v_lshl_add_u32 v21, v1, 4, s40")
    A("v_add_u32 v22, 0x1000, v21")
    A("v_add_u32 v23, 0x2000, v21")
    PL = 144
    def h1load(i):
        ig, pg = i // 4, i % 4
        return f"global_load_dwordx4 v[{PL+4*i}:{PL+4*i+3}], v{21+ig}, s[18:19] offset:{1024*pg} sc1"
    for q in range(8):
        A(f"v_cvt_pk_bf16_f32 v{120+q}, v{AK+2*q}, v{AK+2*q+1}")
    A(f"v_mfma_f32_32x32x16_bf16 v[{AV}:{AV+15}], v[{WP}:{WP+3}], v[120:123], 0")
    A(f"v_mfma_f32_32x32x16_bf16 v[{AV}:{AV+15}], v[{WP+4}:{WP+7}], v[124:127], v[{AV}:{AV+15}]")
    lh1 = [h1load(i) for i in range(12)] + ["global_load_dwordx2 v[6:7], v8, s[18:19] sc1"]
    for l in lh1[:4]: A(l)
    A("v_and_b32 v28, 1, v1")
    A("v_lshlrev_b32 v28, 4, v28")
    A("v_mov_b32 v29, 0x3f80")
    A("v_lshlrev_b32 v29, v28, v29")
    A("v_lshrrev_b32 v28, 1, v27")
    for q in range(4):
        A(f"v_cmp_eq_u32 vcc, {q}, v28")
        A(f"v_cndmask_b32 v{116+q}, 0, v29, vcc")
    A("v_lshrrev_b32 v28, 4, v1")
    A("v_mul_u32_u24 v17, 48, v25")
    A("v_add_u32 v17, v17, v27")
    A(f"v_mul_u32_u24 v17, {KVS}, v17")
    A("v_and_b32 v28, 1, v28")
    A("v_lshl_add_u32 v17, v28, 3, v17")
    A("s_lshl_b32 s40, s36, 4")
    A(f"s_add_u32 s40, s40, {KVI}")
    A("v_add_u32 v17, s40, v17")
    A("v_lshrrev_b32 v28, 3, v26")
    A("v_and_b32 v29, 3, v1")
    A("v_lshl_add_u32 v28, v28, 2, v29")
    A("v_lshl_add_u32 v28, v25, 4, v28")
    A("v_add_u32 v29, 48, v27")
    A("v_cndmask_b32_e64 v18, v29, v28, s[46:47]")
    A("v_add_u32 v28, 32, v25")
    A("v_cndmask_b32_e64 v19, v29, v28, s[46:47]")
    A(f"v_mul_u32_u24 v18, {KVS}, v18")
    A(f"v_mul_u32_u24 v19, {KVS}, v19")
    A(f"v_add_u32 v18, {KVI}, v18")
    A(f"v_add_u32 v19, {KVI}, v19")
    A("v_lshrrev_b32 v28, 4, v1")
    A("v_bfe_u32 v29, v1, 2, 2")
    A("v_lshl_add_u32 v2, v28, 3, v29")
    A("v_lshlrev_b32 v2, 7, v2")
    A("v_lshrrev_b32 v29, 1, v29")
    A("v_and_b32 v30, 3, v1")
    A("v_xor_b32 v29, v29, v30")
    A("v_lshl_add_u32 v2, v29, 4, v2")
    A("v_and_b32 v29, 1, v28")
    A("v_lshl_add_u32 v2, v29, 6, v2")
    A("v_cmp_eq_u32_e64 s[78:79], 1, v29")
    A("v_and_b32 v29, 1, v30")
    A("v_lshl_add_u32 v2, v29, 3, v2")
    A("v_xor_b32 v3, 8, v2")
    A("v_xor_b32 v4, 64, v2")
    A("v_xor_b32 v5, 0x48, v2")
    PQ = 128
    RESB = {8: 192, 9: 208, 10: 224, 11: 240, 0: 80, 1: 96, 2: 112}
    def woreads(k, base):
        return [f"ds_read_b64_tr_b16 v[{base+4*t+2*sec}:{base+4*t+2*sec+1}], v{2+t} offset:{4096*k+512*sec}" for t in range(4) for sec in range(2)]
    H, B, Tl = softmax_stream(AV, EN, [PQ+q for q in range(16)], T, "s48")
    st = sprinkle(H + B + Tl, lh1[4:], 0, h1sp)
    wl2 = wl2 + wodma(48, 4, "wo3")
    st = sprinkle(st, wl2, 50, 110 // len(wl2))
    for l in st: emit(l)
    stamp(9)
    A("s_mov_b32 s77, 0x10000")
    lp = a.newlabel("Ah1"); lpd = a.newlabel("Ah1done")
    A(f"s_waitcnt vmcnt({len(wl2) if h1w else 0})")
    a.label(lp)
    for i in range(12):
        b = PL + 4*i
        t = 120 + (i & 3)
        A(f"v_max3_u32 v{t}, v{b}, v{b+1}, v{b+2}")
        A(f"v_max_u32 v{t}, v{t}, v{b+3}")
        A(f"v_cmp_eq_u32_e64 s[{52+2*i}:{53+2*i}], -1, v{t}")
    A("s_or_b64 s[40:41], s[52:53], s[54:55]")
    for i in range(2, 12): A(f"s_or_b64 s[40:41], s[40:41], s[{52+2*i}:{53+2*i}]")
    A(f"s_cbranch_scc0 {lpd}")
    A("s_sub_u32 s77, s77, 1")
    A(f"s_cbranch_scc1 {lpd}")
    for i in range(12):
        A(f"s_mov_b64 exec, s[{52+2*i}:{53+2*i}]")
        A(h1load(i))
    A("s_mov_b64 exec, -1")
    A("s_waitcnt vmcnt(0)")
    A(f"s_branch {lp}")
    a.label(lpd)
    A("s_mov_b32 s76, s77")
    A("v_cmp_ne_u64_e64 s[10:11], s[6:7], v[6:7]")
    if force_slow: A("s_mov_b64 s[10:11], -1")
    stamp(10)
    for pg in range(4):
        for ig in range(3):
            b = PL + 4*(4*ig+pg)
            d = AK + 4*ig
            A(f"v_mfma_f32_16x16x32_bf16 v[{d}:{d+3}], v[116:119], v[{b}:{b+3}], {'0' if pg == 0 else f'v[{d}:{d+3}]'}")
    for ig in range(3):
        d = AK + 4*ig
        A(f"v_cvt_pk_bf16_f32 v{120+2*ig}, v{d}, v{d+1}")
        A(f"v_cvt_pk_bf16_f32 v{121+2*ig}, v{d+2}, v{d+3}")
        A(f"ds_write_b64 v17, v[{120+2*ig}:{121+2*ig}] offset:{16*KVS*ig}")
    A("s_waitcnt lgkmcnt(0)")
    A("s_lshl_b32 s40, s14, 8")
    A("s_lshr_b32 s41, s36, 1")
    A("s_lshl_b32 s41, s41, 7")
    A("s_add_u32 s40, s40, s41")
    A(f"s_add_u32 s40, s40, {F2OFF}")
    A("v_lshl_add_u32 v16, v27, 3, s40")
    A("s_barrier")
    WB = PL
    for t in range(4):
        A(f"ds_read_b128 v[{WB+8*t}:{WB+8*t+3}], v19 offset:{16*t}")
        A(f"ds_read_b128 v[{WB+8*t+4}:{WB+8*t+7}], v18 offset:{16*t}")
    for t in range(4):
        A(f"s_waitcnt lgkmcnt({7-2*t})")
        A(f"v_mfma_f32_32x32x16_bf16 v[{AV}:{AV+15}], v[{WB+8*t}:{WB+8*t+3}], v[{PQ+4*t}:{PQ+4*t+3}], {'0' if t == 0 else f'v[{AV}:{AV+15}]'}")
        A(f"s_waitcnt lgkmcnt({6-2*t})")
        A(f"v_mfma_f32_32x32x16_bf16 v[{AK}:{AK+15}], v[{WB+8*t+4}:{WB+8*t+7}], v[{PQ+4*t}:{PQ+4*t+3}], {'0' if t == 0 else f'v[{AK}:{AK+15}]'}")
    A("s_lshl_b32 s40, s14, 2")
    A("s_add_u32 s40, s40, s36")
    A(f"s_mul_i32 s41, s40, {tstr}")
    A(f"s_add_u32 s41, s41, {OOFF}")
    A("v_lshl_add_u32 v21, v1, 4, s41")
    for q in range(1, 4): A(f"v_add_u32 v{21+q}, {0x1000*q}, v21")
    A("s_lshl_b32 s41, s40, 15")
    A("s_lshl_b32 s42, s15, 7")
    A("s_add_u32 s41, s41, s42")
    A("v_lshrrev_b32 v28, 4, v1")
    A("v_lshlrev_b32 v20, 11, v27")
    A("v_lshl_add_u32 v20, v28, 4, v20")
    A("v_add_u32 v20, s41, v20")
    A("v_mov_b32 v15, s8")
    A("v_mov_b32 v12, s4")
    A("v_mov_b32 v13, s5")
    A(f"v_add_f32 v120, 0x{f32bits(1e-6):08x}, v{AV}")
    A("v_rcp_f32 v120, v120")
    OD = 120
    for q in range(8):
        A(f"v_mul_f32 v{AK+2*q}, v{AK+2*q}, v120")
        A(f"v_mul_f32 v{AK+2*q+1}, v{AK+2*q+1}, v120")
        A(f"v_cvt_pk_bf16_f32 v{AV+8+q}, v{AK+2*q}, v{AK+2*q+1}")
    slow = []
    def moded(ins):
        l1 = a.newlabel("Ams"); l2 = a.newlabel("Amj")
        A("s_cmp_lg_u64 s[10:11], 0")
        A(f"s_cbranch_scc1 {l1}")
        for x in ins: A(x)
        a.label(l2)
        slow.append((l1, l2, ins))
    moded([f"global_store_dwordx4 v14, v[{AV+8}:{AV+11}], s[18:19]", f"global_store_dwordx4 v14, v[{AV+12}:{AV+15}], s[18:19] offset:256"])
    stamp(11)
    OF = 128; ACC = 32; WB = 64; NB = 4
    def h2load(k):
        return f"global_load_dwordx4 v[{OF+4*k}:{OF+4*k+3}], v{21+(k>>2)}, s[18:19] offset:{1024*(k&3)} sc1"
    wb = lambda k: WB + 16*(k % NB)
    poll = "global_load_dwordx2 v[10:11], v16, s[18:19] sc1"
    A("s_mov_b32 s77, 0x10000")
    A("s_mov_b32 s42, 0")
    if not h1w:
        for l in woreads(0, wb(0)): A(l)
    A("s_waitcnt vmcnt(0)")
    stamp(100)
    A("s_mov_b64 exec, 1")
    moded(["global_store_dwordx2 v15, v[12:13], s[18:19]"])
    A("s_mov_b64 exec, -1")
    A(poll)
    if h1w:
        A("s_barrier")
        for l in woreads(0, wb(0)): A(l)
    for l in woreads(1, wb(1)): A(l)
    ool = []
    def ensure(k):
        lp = a.newlabel("Ap"); lb = a.newlabel("Ab")
        A(f"s_bitcmp1_b32 s42, {k}")
        A(f"s_cbranch_scc0 {lp}")
        a.label(lb)
        A(h2load(k))
        ool.append((k, lp, lb))
    for k in range(D):
        ensure(k)
        if k == 0: stamp(101)
    stamp(102)
    for k in range(16):
        if k + D < 16: ensure(k + D)
        rd = woreads(k+2, wb(k+2)) if k + 2 < 16 else []
        A(f"s_waitcnt vmcnt({min(D, 15-k)}) lgkmcnt({8 if k < 15 else 0})")
        for t in range(4):
            A(f"v_mfma_f32_16x16x32_bf16 v[{ACC+4*t}:{ACC+4*t+3}], v[{wb(k)+4*t}:{wb(k)+4*t+3}], v[{OF+4*k}:{OF+4*k+3}], {'0' if k == 0 else f'v[{ACC+4*t}:{ACC+4*t+3}]'}")
            for l in rd[2*t:2*t+2]: A(l)
    if stamps:
        A("s_cmp_lg_u64 s[10:11], 0")
        A("s_cselect_b32 s40, 100, 0")
        A("s_sub_u32 s76, s76, s40")
    stamp(12)
    A("s_nop 7")
    for u in range(2):
        e, o = ACC + 8*u, ACC + 8*u + 4
        A(f"v_cvt_pk_bf16_f32 v120, v{e}, v{e+1}")
        A(f"v_cvt_pk_bf16_f32 v121, v{e+2}, v{e+3}")
        A(f"v_cvt_pk_bf16_f32 v122, v{o}, v{o+1}")
        A(f"v_cvt_pk_bf16_f32 v123, v{o+2}, v{o+3}")
        d = WB + 4*u
        A(f"v_cndmask_b32_e64 v{d}, v120, v122, s[78:79]")
        A(f"v_cndmask_b32_e64 v{d+1}, v121, v123, s[78:79]")
        A(f"v_cndmask_b32_e64 v{d+2}, v122, v120, s[78:79]")
        A(f"v_cndmask_b32_e64 v{d+3}, v123, v121, s[78:79]")
        A(f"global_store_dwordx4 v20, v[{d}:{d+3}], s[12:13] offset:{64*u} {outmod}")
    if stamps:
        A("s_waitcnt vmcnt(0)")
        stamp(13)
        n = nst[0]
        assert n <= 15
        A("s_waitcnt lgkmcnt(0)")
        A("s_lshl_b32 s38, s2, 2")
        A("s_add_u32 s38, s38, s36")
        A("s_lshl_b32 s38, s38, 7")
        A(f"s_add_u32 s38, s38, {stamps}")
        A("v_mov_b32 v2, s38")
        for i in range(n):
            A(f"v_mov_b32 v4, s{streg(i)}")
            A(f"v_mov_b32 v5, s{streg(i)+1}")
            A(f"global_store_dwordx2 v2, v[4:5], s[18:19] offset:{8*i}")
        A("v_mov_b32 v4, s77")
        A("v_mov_b32 v5, s76")
        A(f"global_store_dwordx2 v2, v[4:5], s[18:19] offset:{8*n}")
        A("s_waitcnt vmcnt(0)")
        print("A stamps", n)
    A("s_endpgm")
    for (l1, l2, ins) in slow:
        a.label(l1)
        A("s_nop 1")
        for x in ins: A(x + " sc1")
        A("s_nop 1")
        A(f"s_branch {l2}")
    for (k, lp, lb) in ool:
        a.label(lp)
        A("s_waitcnt vmcnt(0)")
        A("v_cmp_eq_u64 vcc, s[4:5], v[10:11]")
        A("s_sub_u32 s77, s77, 1")
        A("s_cselect_b32 s42, -1, vcc_lo")
        A(poll)
        A(f"s_bitcmp1_b32 s42, {k}")
        A(f"s_cbranch_scc1 {lb}")
        A(f"s_branch {lp}")
```

```python
import struct, math
from asmlib import *

def f32bits(x): return struct.unpack("<I", struct.pack("<f", x))[0]
def f32(x): return struct.unpack("<f", struct.pack("<f", x))[0]
LOG2E = math.log2(math.e)
L_HI = f32bits(LOG2E)
L_LO = f32bits(LOG2E - f32(LOG2E))
LN2 = f32bits(math.log(2.0))

KVOFF = 0x000000
FBOFF = 0x0C0000
F1OFF = 0x0C4000
F2OFF = 0x0C8000
F3OFF = 0x0CC000
YFOFF = 0x0D0000
FBF = 0x2000
FB2 = 0x14000
OOFF = 0x100000
UTOFF = 0x380000
YOFF = 0x500000
ROWS = 288
TSZ = 16512
CH0 = 128
CHS = 2*TSZ
UB = CH0 + 2*CHS
US = 4096 + 64
PRV = TSZ
CMP = 0
LIN = 1024 + 64

class Sched:
    def __init__(self): self.ops = []; self.alpha = 4.5
    def add(self, text, dst, src, lat=2, cost=1):
        self.ops.append(dict(t=text, d=list(dst), s=list(src), lat=lat, cost=cost))
    def run(self):
        ops = self.ops; n = len(ops)
        prod = {}
        preds = [[] for _ in range(n)]; succs = [[] for _ in range(n)]
        for i, o in enumerate(ops):
            for r in o["s"]:
                if r in prod: preds[i].append(prod[r]); succs[prod[r]].append(i)
            for r in o["d"]: prod[r] = i
        pr = [0]*n
        for i in reversed(range(n)):
            pr[i] = ops[i]["lat"] + max([pr[j] for j in succs[i]], default=0)
        done = [None]*n; out = []; t = 0; left = set(range(n)); lastds = -10
        while left:
            cand = [i for i in left if all(done[p] is not None for p in preds[i])]
            def rdy(i): return max([done[p] + ops[p]["lat"] for p in preds[i]], default=0)
            ok = [i for i in cand if rdy(i) <= t]
            if ok:
                isds = lambda k: ops[k]["t"].startswith("ds_")
                ok2 = [k for k in ok if not (isds(k) and t - lastds < 5)] or ok
                imax = max(ok2, key=lambda i: (pr[i], -i))
                if pr[imax]*self.alpha >= len(left): i = imax
                else: i = min(ok2, key=lambda i: (pr[i], i))
                if isds(i): lastds = t
            else: i = min(cand, key=lambda i: (rdy(i), -pr[i])); t = rdy(i)
            done[i] = t; out.append(ops[i]["t"]); left.remove(i); t += ops[i]["cost"]
        return out, t

def kgen_stream(P, DT, sL, base):
    S = Sched()
    nxt = [base]
    def R(k=1):
        r = nxt[0]; nxt[0] += k; return r
    are, aim, bre, bim, cre, cim = P
    def op(t, d, s, **kw): S.add(t, d, s, **kw)
    a1, p1, br, bi, a2, phi = [R() for _ in range(6)]
    op(f"v_mul_f32 v{a1}, v{DT}, v{are}", [a1], [])
    op(f"v_mul_f32 v{p1}, v{DT}, v{aim}", [p1], [])
    op(f"v_mul_f32 v{br}, v{DT}, v{bre}", [br], [])
    op(f"v_mul_f32 v{bi}, v{DT}, v{bim}", [bi], [])
    op(f"v_mul_f32 v{a2}, {sL}, v{a1}", [a2], [a1])
    op(f"v_mul_f32 v{phi}, 0.15915494, v{p1}", [phi], [p1])
    t0, t1 = R(), R(); F = (R(), R())
    op(f"v_mul_f32_e64 v{t0}, v{cim}, -v{bi}", [t0], [bi])
    op(f"v_mul_f32_e64 v{t1}, v{cim}, -v{br}", [t1], [br])
    op(f"v_fma_f32 v{F[0]}, v{cre}, v{br}, v{t0}", [F[0]], [br, t0])
    op(f"v_fma_f32 v{F[1]}, -v{cre}, v{bi}, v{t1}", [F[1]], [bi, t1])
    def anchor(g, conj):
        e, p, s, c = R(), R(), R(), R()
        if g == 1:
            ea, pa = a2, phi
        else:
            ea, pa = R(), R()
            op(f"v_mul_f32 v{ea}, 0x{f32bits(float(g)):08x}, v{a2}", [ea], [a2])
            op(f"v_mul_f32 v{pa}, 0x{f32bits(float(g)):08x}, v{phi}", [pa], [phi])
        op(f"v_exp_f32 v{e}, v{ea}", [e], [ea], lat=4, cost=2)
        op(f"v_fract_f32 v{p}, v{pa}", [p], [pa])
        op(f"v_sin_f32 v{s}, v{p}", [s], [p], lat=4, cost=2)
        op(f"v_cos_f32 v{c}, v{p}", [c], [p], lat=4, cost=2)
        z = (R(), R())
        op(f"v_mul_f32 v{z[0]}, v{e}, v{c}", [z[0]], [e, c])
        if conj: op(f"v_mul_f32_e64 v{z[1]}, v{e}, -v{s}", [z[1]], [e, s])
        else: op(f"v_mul_f32 v{z[1]}, v{e}, v{s}", [z[1]], [e, s])
        return z
    Z8 = anchor(8, 1); Z128 = anchor(128, 0); Z1 = anchor(1, 0)
    S.alpha = 1e9
    pre, t = S.run()
    def put(row, z):
        r = R()
        return [f"v_cvt_pk_bf16_f32 v{r}, v{z[0]}, v{z[1]}", f"ds_write_addtid_b32 v{r} offset:{row*ROWS}"]
    def cmul(x, y, row):
        d = (R(), R())
        L = [f"v_mul_f32_e64 v{d[0]}, v{x[1]}, -v{y[1]}", f"v_mul_f32 v{d[1]}, v{x[1]}, v{y[0]}",
             f"v_fmac_f32 v{d[0]}, v{x[0]}, v{y[0]}", f"v_fmac_f32 v{d[1]}, v{x[0]}, v{y[1]}"] + put(row, d)
        return d, L
    X, Y = put(0, F) + put(24, Z128), put(17, Z1)
    f = F
    for c in range(1, 16):
        f, L = cmul(f, Z8, c); X += L
    Rr = [None, Z1]
    for r in range(2, 8):
        d, L = cmul(Rr[r-1], Z1, 16+r); Rr.append(d); Y += L
    Qs = [None, Z128]
    for q in range(2, 17):
        row = 32 + 4*(q-2) if q < 4 else (40 + 2*(q-4) if q < 8 else 40 + q)
        d, L = cmul(Qs[q-1], Z128, row); Qs.append(d); Y += L
    leafs = [(Rr[r], Qs[1], 24+r) for r in range(1, 8)] + [(Rr[2*r], Qs[q], 32+4*(q-2)+r) for q in (2, 3) for r in range(1, 4)] + \
            [(Rr[4], Qs[q], 41+2*(q-4)) for q in range(4, 8)]
    for k, (x, y, row) in enumerate(leafs):
        d, L = cmul(x, y, row)
        if k < 11: X += L
        else: Y += L
    out = list(pre)
    for k in range(max(len(X), len(Y))):
        if k < len(X): out.append(X[k])
        if k < len(Y): out.append(Y[k])
    assert nxt[0] <= 256, nxt[0]
    return out, len(out)

def emit_B(a, stamps=None, prio=None, prio2=None, i1=40, i2=230, uearly=True, ysleep=1, nomem=False, force_slow=False, outmod='', i0=None, nonce=False, tlb=0, pfl=0, iy=300, pfw=None, pfo=None):
    def A(t):
        if nomem:
            t = "\n".join(l for l in t.split("\n") if not ((" sc1" in l) or (" lds" in l) or ("s[22:23]" in l and "store" in l) or ("s_cbranch_vccz" in l and False)))
            if "0x40000" in t: t = t.replace("0x40000", "0")
            if not t: return
        a(t)
    nst = [0]
    def stamp():
        if stamps:
            i = nst[0]; nst[0] += 1
            A(f"s_memtime s[{64+2*i}:{65+2*i}]")
    stamp()
    A("s_load_dwordx16 s[4:19], s[0:1], 32")
    A("s_load_dwordx4 s[20:23], s[0:1], 96")
    A("s_load_dwordx4 s[40:43], s[0:1], 112")
    A("s_load_dwordx2 s[90:91], s[0:1], 8")
    A("s_load_dwordx2 s[92:93], s[0:1], 24")
    if prio is not None: A(f"s_setprio {prio}")
    A("v_and_b32 v1, 63, v0")
    A("v_lshrrev_b32 v2, 6, v0")
    A("s_getreg_b32 s3, hwreg(HW_REG_XCC_ID, 0, 4)")
    A("s_and_b32 s25, s2, 7")
    A("s_lshr_b32 s26, s2, 3")
    A("v_readfirstlane_b32 s24, v2")
    A("s_lshl_b32 s27, s25, 6")
    A("s_lshl_b32 s28, s26, 1")
    A("s_add_u32 s27, s27, s28")
    A("s_and_b32 s29, s24, 1")
    A("s_lshr_b32 s30, s24, 1")
    A("s_add_u32 s28, s27, s29")
    A("s_lshl_b32 s38, s28, 8")
    A("s_lshl_b32 s39, s30, 7")
    A("s_add_u32 s38, s38, s39")
    A("v_lshl_add_u32 v25, v1, 1, s38")
    A("s_lshl_b32 s38, s28, 1")
    A("v_mov_b32 v26, s38")
    for i in range(6): A(f"v_mov_b32 v{2+i}, 0")
    A("s_lshl_b32 s38, s26, 16")
    A("s_lshl_b32 s39, s24, 14")
    A("s_add_u32 s38, s38, s39")
    A("s_lshl_b32 s39, s25, 7")
    A("s_add_u32 s38, s38, s39")
    A("v_lshrrev_b32 v16, 3, v1")
    A("v_bfe_u32 v17, v1, 4, 1")
    A("v_and_b32 v18, 7, v1")
    A("v_xor_b32 v17, v17, v18")
    A("v_lshlrev_b32 v16, 10, v16")
    A("v_lshl_add_u32 v16, v17, 4, v16")
    A("s_lshl_b32 s39, s29, 6")
    A("v_xor_b32 v16, s39, v16")
    A("v_add_u32 v16, s38, v16")
    A("v_xor_b32 v17, 32, v16")
    A("s_lshl_b32 s37, s24, 11")
    A(f"s_add_u32 s37, s37, {UB}")
    if nonce: A("s_memrealtime s[50:51]")
    A("s_waitcnt lgkmcnt(0)")
    if nonce:
        lnn = a.newlabel("Bnon")
        A("s_or_b32 s38, s2, s24")
        A(f"s_cbranch_scc1 {lnn}")
        A("s_or_b32 s50, s50, 1")
        A("s_bitset1_b32 s51, 31")
        A("v_mov_b32 v125, 0")
        A("v_mov_b32 v126, s50")
        A("v_mov_b32 v127, s51")
        A("s_mov_b64 exec, 1")
        a("global_store_dwordx2 v125, v[126:127], s[40:41] sc1")
        A("s_mov_b64 exec, -1")
        a.label(lnn)
    A("global_load_ushort v30, v26, s[18:19]")
    A("global_load_ushort v31, v26, s[20:21]")
    for i in range(6):
        A(f"global_load_short_d16_hi v{2+i}, v25, s[{6+2*i}:{7+2*i}]")
    A("s_mov_b32 s44, s4"); A("s_mov_b32 s45, s5"); A(f"s_mov_b32 s46, {2048*1024}"); A("s_mov_b32 s47, 0x00020000")
    def udma():
        A("s_mov_b32 m0, s37")
        A("s_movk_i32 s38, 0x2000")
        A("buffer_load_dwordx4 v16, s[44:47], 0 offen lds")
        A("s_add_u32 m0, s37, 1024")
        A("s_nop 0")
        A("buffer_load_dwordx4 v17, s[44:47], s38 offen lds")
    if uearly: udma()
    nu = 2 if uearly else 0
    if tlb:
        A("v_and_b32 v124, 15, v1")
        A(f"v_lshlrev_b32 v124, 18, v124")
        A("global_load_dword v40, v124, s[22:23]")
        A("v_and_b32 v123, 31, v1")
        A("v_min_u32 v123, 22, v123")
        A(f"v_lshlrev_b32 v123, 18, v123")
        A("global_load_dword v41, v123, s[42:43] offset:2048")
        nu += 2
    A(f"s_mul_i32 s31, s29, {CHS}")
    A(f"s_add_u32 s31, s31, {CH0}")
    A(f"s_mul_i32 s32, s30, {TSZ}")
    A("s_add_u32 s32, s32, s31")
    A("s_lshl_b32 s33, s30, 13")
    A("s_add_u32 s33, s33, s31")
    A(f"s_add_u32 s33, s33, {PRV}")
    A("s_mov_b32 s34, 0x01000100")
    A("s_mov_b32 s35, 0x03020302")
    A("v_and_b32 v35, 15, v1")
    A("v_lshrrev_b32 v36, 4, v1")
    A("v_and_b32 v37, 3, v1")
    A("v_bfe_u32 v38, v1, 2, 2")
    A("v_mul_u32_u24 v33, %d, v35" % ROWS)
    A("v_lshl_add_u32 v33, v36, 4, v33")
    A("v_add_u32 v33, s31, v33")
    A("v_min_u32 v34, 8, v35")
    A("v_mul_u32_u24 v34, %d, v34" % ROWS)
    A("v_lshl_add_u32 v34, v36, 4, v34")
    A(f"s_add_u32 s38, s31, {48*ROWS}")
    A("v_add_u32 v34, s38, v34")
    A("v_lshrrev_b32 v39, 5, v1")
    A("v_lshl_add_u32 v18, v39, 2, v37")
    A("v_lshl_add_u32 v18, v18, 3, v38")
    A("v_lshlrev_b32 v18, 7, v18")
    A("v_lshrrev_b32 v19, 1, v38")
    A("v_lshl_add_u32 v19, v37, 1, v19")
    A("v_lshl_add_u32 v18, v19, 4, v18")
    A("v_and_b32 v24, 1, v36")
    A("v_lshl_add_u32 v18, v24, 3, v18")
    A("s_lshl_b32 s38, s24, 5")
    A("v_xor_b32 v18, s38, v18")
    A(f"v_add_u32 v18, {UB}, v18")
    A("v_xor_b32 v19, 16, v18")
    A("s_lshl_b32 s38, s25, 18")
    A("s_lshl_b32 s39, s24, 16")
    A("s_add_u32 s38, s38, s39")
    A("s_lshl_b32 s39, s26, 8")
    A("s_add_u32 s38, s38, s39")
    A(f"s_add_u32 s38, s38, {UTOFF}")
    A("v_lshrrev_b32 v21, 1, v37")
    A("v_lshl_add_u32 v21, v24, 1, v21")
    A("v_lshlrev_b32 v20, 13, v21")
    A("v_lshl_add_u32 v21, v39, 2, v38")
    A("v_lshl_add_u32 v20, v21, 5, v20")
    A("v_and_b32 v21, 1, v1")
    A("v_lshl_add_u32 v20, v21, 4, v20")
    A("v_add_u32 v20, s38, v20")
    A("v_add_u32 v21, 0x8000, v20")
    A("s_lshl_b32 s36, s2, 2")
    A("s_add_u32 s36, s36, s24")
    A("s_lshl_b32 s38, s30, 21")
    A("s_lshr_b32 s39, s26, 4")
    A("s_lshl_b32 s39, s39, 19")
    A("s_add_u32 s38, s38, s39")
    A("s_and_b32 s39, s28, 31")
    A("s_lshl_b32 s39, s39, 11")
    A("s_add_u32 s38, s38, s39")
    A("s_lshl_b32 s39, s25, 7")
    A("s_add_u32 s38, s38, s39")
    A("s_add_u32 s38, s38, 1024")
    A("v_lshrrev_b32 v22, 1, v35")
    A("v_lshlrev_b32 v22, 16, v22")
    A("v_and_b32 v23, 1, v1")
    A("v_lshl_add_u32 v22, v23, 6, v22")
    A("v_lshl_add_u32 v22, v36, 4, v22")
    A("v_add_u32 v22, s38, v22")
    A("v_add_u32 v23, 0x100000, v22")
    A("s_lshl_b32 s3, s3, 27")
    A("v_mov_b32 v27, 0")
    A("v_mov_b32 v32, 0x3f80")
    if pfl & 1:
        A("s_cmp_lt_u32 s24, 2")
        A(f"s_cselect_b32 s38, {FBOFF+FBF}, {YFOFF-1024}" if False else f"s_mov_b32 s38, {YFOFF-1024}")
        A(f"s_cmov_b32 s38, {FBOFF+FBF}")
        A("s_lshl_b32 s39, s25, 10")
        A("s_add_u32 s38, s38, s39")
        A("s_lshl_b32 s39, s24, 9")
        A("s_add_u32 s38, s38, s39")
        A("v_lshl_add_u32 v42, v37, 7, s38")
        A("global_load_dword v40, v42, s[42:43]")
        nu += 1
    if pfl & 2:
        A("global_load_dword v41, v20, s[42:43]")
        A("global_load_dword v43, v21, s[42:43]")
        nu += 2
    A(f"s_waitcnt vmcnt({6+nu})")
    A("v_lshlrev_b32 v30, 16, v30")
    A("s_mov_b32 s48, 0x%08x" % L_HI)
    A("v_mul_f32 v28, s48, v30")
    A("v_fma_f32 v29, v30, s48, -v28")
    A("v_fmac_f32 v29, 0x%08x, v30" % L_LO)
    A("v_exp_f32 v28, v28")
    A("v_mul_f32 v29, 0x%08x, v29" % LN2)
    A("v_fmac_f32 v28, v28, v29")
    A("v_cvt_pk_bf16_f32 v28, v28, v28")
    A("v_lshlrev_b32 v30, 16, v28")
    A("v_lshlrev_b32 v31, 16, v31")
    A("v_cmp_eq_u32 vcc, 0, v1")
    A("v_cndmask_b32 v31, 0, v31, vcc")
    A(f"s_waitcnt vmcnt({nu})")
    stamp()
    if not uearly and i0 is None: udma()
    A("s_mov_b32 m0, s32")
    ks, kt = kgen_stream(list(range(2, 8)), 30, "s48", 52)
    print("kgen", len(ks), "instrs, model slots", kt)
    A(f"ds_write_addtid_b32 v32 offset:{16*ROWS}")
    npf = [0]
    for idx, l in enumerate(ks):
        if idx == i0 and not uearly:
            udma(); A("s_mov_b32 m0, s32")
        if idx == i1:
            A("s_waitcnt vmcnt(0)")
            A("s_barrier")
            for q in range(2):
                for sec in range(2):
                    A(f"ds_read_b64_tr_b16 v[{8+4*q+2*sec}:{9+4*q+2*sec}], v{18+q} offset:{512*sec}")
            A("s_waitcnt lgkmcnt(2)")
            A("global_store_dwordx4 v20, v[8:11], s[42:43]")
            A("s_waitcnt lgkmcnt(0)")
            A("global_store_dwordx4 v21, v[12:15], s[42:43]")
            stamp()
        if idx == iy and (pfl & 4):
            A("global_load_dword v2, v22, s[22:23]")
            A("global_load_dword v3, v23, s[22:23]")
        if idx == i1 + 4:
            A("global_load_dwordx2 v[28:29], v27, s[40:41]")
        if idx == pfw:
            A("s_lshl_b32 s38, s26, 4")
            A("v_lshrrev_b32 v44, 4, v0")
            A("v_add_u32 v44, s38, v44")
            A("v_mul_u32_u24 v44, 3072, v44")
            A("v_and_b32 v45, 7, v1")
            A("v_lshl_add_u32 v44, v45, 7, v44")
            A("v_and_b32 v45, 8, v1")
            A("v_lshl_add_u32 v44, v45, 8, v44")
            A("global_load_dword v4, v44, s[90:91]")
            if i1 < idx <= i2: npf[0] += 1
        if idx == pfo:
            A("s_lshl_b32 s38, s26, 14")
            A("s_lshl_b32 s39, s24, 12")
            A("s_add_u32 s38, s38, s39")
            A("v_lshl_add_u32 v45, v1, 7, s38")
            A("s_mov_b64 exec, 0xffffffff")
            A("global_load_dword v5, v45, s[92:93]")
            A("s_mov_b64 exec, -1")
            if i1 < idx <= i2: npf[0] += 1
        if idx == i2:
            A("s_lshl_b32 s38, s25, 10")
            A("s_lshl_b32 s39, s26, 3")
            A("s_add_u32 s38, s38, s39")
            A("s_lshl_b32 s39, s24, 8")
            A("s_add_u32 s38, s38, s39")
            A(f"s_add_u32 s38, s38, {FBOFF}")
            A("v_mov_b32 v26, s38")
            A(f"s_add_u32 s8, s38, {FB2}")
            A(f"v_add_u32 v25, {FBF}, v26")
            A("s_mov_b32 s49, 0x40000")
            ln = a.newlabel("Bnonce"); lnd = a.newlabel("Bnonced")
            A(f"s_waitcnt vmcnt({npf[0]})")
            a.label(ln)
            A("v_readfirstlane_b32 s50, v28")
            A("v_readfirstlane_b32 s51, v29")
            A("s_min_u32 s38, s50, s51")
            A("s_cmp_lg_u32 s38, 0")
            A(f"s_cbranch_scc1 {lnd}")
            A("s_sub_u32 s49, s49, 1")
            A(f"s_cbranch_scc1 {lnd}")
            A("s_sleep 2")
            A("global_load_dwordx2 v[28:29], v27, s[40:41] sc1")
            A("s_waitcnt vmcnt(0)")
            A(f"s_branch {ln}")
            a.label(lnd)
            A("s_or_b32 s5, s51, s3")
            A("s_mov_b32 s4, s50")
            A("v_mov_b32 v29, s5")
            A("s_mov_b64 exec, 1")
            A("global_store_dwordx2 v25, v[28:29], s[42:43]")
            A("s_mov_b64 exec, -1")
            stamp()
        A(l)
    A("s_lshl_b32 s38, s25, 10")
    A("s_lshr_b32 s39, s26, 3")
    A("s_lshl_b32 s39, s39, 8")
    A("s_add_u32 s38, s38, s39")
    A(f"s_add_u32 s38, s38, {FBOFF}")
    A("v_and_b32 v26, 31, v1")
    A("v_lshl_add_u32 v26, v26, 3, s38")
    A(f"v_add_u32 v25, {FB2}, v26")
    A("v_xor_b32 v27, 1, v39")
    A("v_lshl_add_u32 v26, v27, 13, v26")
    A("s_lshl_b32 s38, s27, 12")
    A("s_lshl_b32 s39, s24, 11")
    A("s_add_u32 s38, s38, s39")
    A(f"s_add_u32 s38, s38, {UTOFF}")
    A("v_lshl_add_u32 v27, v1, 4, s38")
    A("s_waitcnt lgkmcnt(0)")
    stamp()
    A("s_barrier")
    A("global_load_dwordx2 v[28:29], v26, s[42:43] sc1")
    D = 40
    OP = 64
    for k in range(8):
        b = OP + 16*k
        o = 64*(k & 3) + TSZ*(k >> 2)
        A(f"ds_read_b128 v[{b}:{b+3}], v33 offset:{o}")
        A(f"ds_read_b128 v[{b+4}:{b+7}], v33 offset:{o+16*ROWS}")
        A(f"ds_read_b128 v[{b+8}:{b+11}], v33 offset:{o+32*ROWS}")
        A(f"ds_read_b128 v[{b+12}:{b+15}], v34 offset:{o}")
        if k >= 3:
            kk = k - 3; bb = OP + 16*kk
            A("s_waitcnt lgkmcnt(12)")
            for t in range(3):
                A(f"v_mfma_f32_16x16x32_bf16 v[{D+4*t}:{D+4*t+3}], v[{bb+4+4*t}:{bb+7+4*t}], v[{bb}:{bb+3}], {'0' if kk == 0 else f'v[{D+4*t}:{D+4*t+3}]'}")
    for kk in range(5, 8):
        bb = OP + 16*kk
        A(f"s_waitcnt lgkmcnt({4*(7-kk)})")
        if kk == 7: A("s_barrier")
        for t in range(3):
            A(f"v_mfma_f32_16x16x32_bf16 v[{D+4*t}:{D+4*t+3}], v[{bb+4+4*t}:{bb+7+4*t}], v[{bb}:{bb+3}], v[{D+4*t}:{D+4*t+3}]")
    A("s_mov_b32 s49, 0x40000")
    lf = a.newlabel("Bflag"); lfd = a.newlabel("Bflagdone"); lslow = a.newlabel("Bslow"); lgo = a.newlabel("Bgo"); lfw = a.newlabel("Bflagw")
    A("s_waitcnt vmcnt(0)")
    A("v_cmp_ne_u64_e64 s[6:7], s[4:5], v[28:29]")
    A("s_cmp_lg_u32 s6, 0")
    A(f"s_cbranch_scc1 {lfw}" if not force_slow else f"s_branch {lfw}")
    a.label(lfd)
    A("s_mov_b64 s[6:7], 0")
    a.label(lgo)
    def ool(lf=lf, lfd=lfd):
        a.label(lf)
        A("s_waitcnt vmcnt(0)")
        A("v_cmp_ne_u64_e64 s[6:7], s[4:5], v[28:29]")
        A("s_cmp_eq_u32 s6, 0")
        if not force_slow: A(f"s_cbranch_scc1 {lfd}")
        a.label(lfw)
        A("v_and_b32 v29, 0x87ffffff, v29")
        A("v_cmp_ne_u64 vcc, s[50:51], v[28:29]")
        A("s_cmp_eq_u32 vcc_hi, 0")
        A(f"s_cbranch_scc1 {lslow}")
        A("s_sub_u32 s49, s49, 1")
        A(f"s_cbranch_scc1 {lfd}")
        lns = a.newlabel("Bnos")
        A(f"s_cmp_lg_u32 s49, {0x40000 - 8}")
        A(f"s_cbranch_scc1 {lns}")
        A(f"s_sub_u32 s38, s8, {FB2}")
        A("v_mov_b32 v30, s38")
        A("v_mov_b32 v28, s4")
        A("v_mov_b32 v29, s5")
        A("s_mov_b64 exec, 1")
        A("global_store_dwordx2 v30, v[28:29], s[42:43] sc1")
        A("s_mov_b64 exec, -1")
        A("s_waitcnt vmcnt(0)")
        a.label(lns)
        A("s_sleep 2")
        A("global_load_dwordx2 v[28:29], v26, s[42:43] sc1")
        A(f"s_branch {lf}")
        a.label(lslow)
        A("s_cmp_eq_u32 s7, 0")
        if not force_slow: A(f"s_cbranch_scc1 {lfd}")
        A(f"s_sub_u32 s38, s8, {FB2}")
        A("v_mov_b32 v30, s38")
        A("v_mov_b32 v28, s4")
        A("v_mov_b32 v29, s5")
        A("s_mov_b64 exec, 1")
        A("global_store_dwordx2 v30, v[28:29], s[42:43] sc1")
        A("s_mov_b64 exec, -1")
        A("global_store_dwordx4 v20, v[8:11], s[42:43] sc1")
        A("global_store_dwordx4 v21, v[12:15], s[42:43] sc1")
        A("s_waitcnt vmcnt(0)")
        A("v_mov_b32 v26, s8")
        A("v_mov_b32 v29, s51")
        A("s_mov_b64 exec, 1")
        A("global_store_dwordx2 v26, v[28:29], s[42:43] sc1")
        A("s_mov_b64 exec, -1")
        A("s_mov_b64 s[6:7], -1")
        l2 = a.newlabel("Bflag2")
        a.label(l2)
        A("s_nop 1")
        A("global_load_dwordx2 v[28:29], v25, s[42:43] sc1")
        A("s_waitcnt vmcnt(0)")
        A("v_cmp_ne_u64 vcc, s[50:51], v[28:29]")
        A(f"s_cbranch_vccz {lgo}")
        A("s_sub_u32 s49, s49, 1")
        A(f"s_cbranch_scc1 {lgo}")
        A("s_sleep 2")
        A(f"s_branch {l2}")
    for j in range(2):
        A(f"global_load_dwordx4 v[{8+4*j}:{11+4*j}], v27, s[42:43] offset:{1024*j} sc1")
    stamp()
    A("v_lshlrev_b32 v53, 8, v39")
    A("v_lshl_add_u32 v53, v35, 4, v53")
    A("v_lshl_add_u32 v53, v24, 3, v53")
    A("v_add_u32 v53, s33, v53")
    A("v_cmp_gt_u32 vcc, 2, v36")
    A("v_lshlrev_b32 v54, 2, v35")
    A("v_lshlrev_b32 v55, 3, v35")
    A("v_cndmask_b32 v54, v54, v55, vcc")
    A("v_lshl_add_u32 v54, v36, 7, v54")
    A("v_add_u32 v54, s33, v54")
    A("v_cndmask_b32 v55, 64, 4, vcc")
    A("v_add_u32 v55, v54, v55")
    A("v_lshlrev_b32 v78, 1, v35")
    A("v_lshl_add_u32 v78, v36, 7, v78")
    A("v_add_u32 v78, s33, v78")
    A("v_mov_b32 v80, 0")
    A("v_mov_b32 v81, 0")
    A("v_mov_b32 v79, s33")
    A(f"ds_write_b64 v79, v[80:81] offset:{LIN-8}")
    A(f"v_add_f32 v{D}, v{D}, v31")
    for t in range(3):
        A(f"v_cvt_pk_bf16_f32 v{72+2*t}, v{D+4*t}, v{D+4*t+1}")
        A(f"v_cvt_pk_bf16_f32 v{73+2*t}, v{D+4*t+2}, v{D+4*t+3}")
    A(f"ds_write_b32 v54, v74 offset:{CMP}")
    A(f"ds_write_b32 v55, v75 offset:{CMP}")
    A(f"ds_write_b16 v78, v76 offset:{CMP+512}")
    A(f"ds_write_b16_d16_hi v78, v76 offset:{CMP+512+32}")
    A(f"ds_write_b16 v78, v77 offset:{CMP+512+64}")
    A(f"ds_write_b16_d16_hi v78, v77 offset:{CMP+512+96}")
    A(f"ds_write_b64 v53, v[72:73] offset:{LIN}")
    A("v_lshl_add_u32 v82, v1, 3, s33")
    A("v_lshl_add_u32 v83, v1, 4, s33")
    A("v_lshl_add_u32 v79, v1, 5, s33")
    A("v_lshl_add_u32 v32, v1, 2, s33")
    A("s_waitcnt lgkmcnt(1)")
    A(f"ds_read_b64 v[84:85], v82 offset:{CMP}")
    A(f"ds_read_u16 v86, v82 offset:{CMP+8}")
    A(f"ds_read_b32 v87, v32 offset:{CMP+256}")
    A(f"ds_read_u16 v88, v32 offset:{CMP+260}")
    A(f"ds_read_b32 v89, v32 offset:{CMP+512}")
    A(f"ds_read_u16 v90, v32 offset:{CMP+516}")
    A("s_lshl_b32 s38, s30, 11")
    A("v_add_u32 v82, s38, v82")
    A("s_lshl_b32 s38, s30, 13")
    A("s_add_u32 s38, s38, s31")
    A("v_lshl_add_u32 v61, v1, 5, s38")
    A("s_waitcnt lgkmcnt(4)")
    A("v_perm_b32 v92, v84, v84, s34")
    A("v_alignbit_b32 v93, v85, v84, 16")
    A("v_perm_b32 v94, v85, v85, s34")
    A("v_alignbit_b32 v95, v86, v85, 16")
    A(f"ds_write_b128 v83, v[92:95] offset:{LIN+512}")
    A("s_waitcnt lgkmcnt(3)")
    A("v_perm_b32 v96, v87, v87, s34")
    A("v_mov_b32 v97, v87")
    A("v_perm_b32 v98, v87, v87, s35")
    A("v_perm_b32 v99, v88, v88, s34")
    A(f"ds_write_b128 v83, v[96:99] offset:{LIN+1024}")
    A("s_waitcnt lgkmcnt(2)")
    A("v_perm_b32 v100, v89, v89, s34")
    A("v_perm_b32 v101, v89, v89, s34")
    A("v_mov_b32 v102, v89")
    A("v_perm_b32 v103, v89, v89, s35")
    A("v_perm_b32 v104, v89, v89, s35")
    A("v_perm_b32 v105, v89, v89, s35")
    A("v_perm_b32 v106, v90, v90, s34")
    A("v_perm_b32 v107, v90, v90, s34")
    A(f"ds_write_b128 v79, v[100:103] offset:{LIN+2048}")
    A(f"ds_write_b128 v79, v[104:107] offset:{LIN+2048+16}")
    A("v_lshlrev_b32 v52, 5, v37")
    A("v_lshl_add_u32 v52, v38, 3, v52")
    A("v_lshlrev_b32 v55, 6, v36")
    A("v_sub_u32 v52, v52, v55")
    A("s_lshl_b32 s38, s30, 10")
    A("s_add_u32 s38, s38, s31")
    A("s_add_u32 s38, s38, 96")
    A("v_add_u32 v52, s38, v52")
    A("v_lshlrev_b32 v56, 5, v35")
    A("v_lshl_add_u32 v56, v36, 4, v56")
    A("s_lshl_b32 s38, s30, 8")
    A("v_subrev_u32 v56, s38, v56")
    A(f"s_mul_i32 s38, s29, {US}")
    A(f"s_add_u32 s38, s38, {UB+32}")
    A("v_add_u32 v57, s38, v56")
    A("s_waitcnt lgkmcnt(0)")
    O = 100
    for j in range(4):
        b = O + 10*j
        A(f"ds_read_b64 v[{b+8}:{b+9}], v82 offset:{LIN-8+512*j}")
        A(f"ds_read_b64 v[{b}:{b+1}], v82 offset:{LIN+512*j}")
    for tau in range(4):
        if 64*tau+32 <= 64: A(f"v_cmp_le_i32_e64 s[{52+2*tau}:{53+2*tau}], {64*tau+32}, v56")
        else:
            A(f"v_cmp_le_i32 vcc, 0x{64*tau+32:x}, v56")
            A(f"s_mov_b64 s[{52+2*tau}:{53+2*tau}], vcc")
    A("v_lshlrev_b32 v58, 3, v36")
    A("v_sub_u32 v58, v35, v58")
    A("s_lshl_b32 s38, s30, 6")
    A("v_add_u32 v58, s38, v58")
    A("v_cmp_le_i32_e64 s[60:61], -16, v58")
    A("v_cmp_le_i32_e64 s[62:63], -12, v58")
    for j in range(4):
        b = O + 10*j
        A(f"s_waitcnt lgkmcnt({6-2*j+2*j})" if False else f"s_waitcnt lgkmcnt({6})")
        A(f"v_alignbit_b32 v{b+2}, v{b}, v{b+9}, 16")
        A(f"v_alignbit_b32 v{b+3}, v{b+1}, v{b}, 16")
        A(f"v_mov_b32 v{b+4}, v{b+9}")
        A(f"v_mov_b32 v{b+5}, v{b}")
        A(f"v_alignbit_b32 v{b+6}, v{b+9}, v{b+8}, 16")
        A(f"v_alignbit_b32 v{b+7}, v{b}, v{b+9}, 16")
        A(f"ds_write_b128 v61, v[{b}:{b+3}] offset:{2048*j}")
        A(f"ds_write_b128 v61, v[{b+4}:{b+7}] offset:{2048*j+16}")
    A("v_and_b32 v59, 1, v1")
    A(f"v_mul_u32_u24 v59, {US}, v59")
    A("v_lshrrev_b32 v60, 1, v1")
    A("v_lshl_add_u32 v59, v60, 4, v59")
    A("s_lshl_b32 s38, s24, 10")
    A(f"s_add_u32 s38, s38, {UB}")
    A("v_add_u32 v59, s38, v59")
    stamp()
    A("s_waitcnt vmcnt(0)")
    for j in range(2):
        A(f"ds_write_b128 v59, v[{8+4*j}:{11+4*j}] offset:{512*j}")
    A("s_waitcnt lgkmcnt(0)")
    stamp()
    A("s_barrier")
    ACC = 64
    SET = [96, 160]
    def loads(tau):
        s = SET[tau & 1]
        L = []
        for x in range(8):
            ar = s + 4*x
            L.append(f"ds_read_b64_tr_b16 v[{ar}:{ar+1}], v52 offset:{2048*x+256*tau+32}")
            L.append(f"ds_read_b64_tr_b16 v[{ar+2}:{ar+3}], v52 offset:{2048*x+256*tau}")
            br = s + 32 + 4*x
            if x == 0:
                L.append("\n".join([f"v_mov_b32 v{br+i}, 0" for i in range(4)] +
                    [f"v_subrev_u32 v59, {64*tau+64 if 64*tau+64<=64 else hex(64*tau+64)}, v57",
                     f"s_mov_b64 exec, s[{52+2*tau}:{53+2*tau}]",
                     f"ds_read_b128 v[{br}:{br+3}], v59",
                     "s_mov_b64 exec, -1"]))
            else:
                L.append(f"ds_read_b128 v[{br}:{br+3}], v57 offset:{512*(x-1)+64*(7-tau)}")
        return L
    for l in loads(0): A(l)
    if iy == "conv" and (pfl & 4):
        A("global_load_dword v16, v22, s[22:23]")
        A("global_load_dword v17, v23, s[22:23]")
    A("v_xor_b32 v60, 0x2000, v83") if False else None
    A("s_xor_b32 s38, s30, 1")
    A("s_lshl_b32 s38, s38, 13")
    A("s_add_u32 s38, s38, s31")
    A(f"s_add_u32 s38, s38, {PRV}")
    A("v_lshl_add_u32 v60, v1, 4, s38")
    A("v_mov_b32 v61, v83")
    if prio2 is not None: A(f"s_setprio {prio2}")
    first = [True]*8
    for tau in range(4):
        s = SET[tau & 1]
        A("s_waitcnt lgkmcnt(0)")
        if tau == 0:
            A(f"v_cndmask_b32_e64 v{s}, 0, v{s}, s[60:61]")
            A(f"v_cndmask_b32_e64 v{s+1}, 0, v{s+1}, s[60:61]")
            A(f"v_cndmask_b32_e64 v{s+2}, 0, v{s+2}, s[62:63]")
            A(f"v_cndmask_b32_e64 v{s+3}, 0, v{s+3}, s[62:63]")
        nxt = loads(tau+1) if tau < 3 else []
        pairs = [(x, c) for x in range(8) for c in range(8-x)]
        for idx, (x, c) in enumerate(pairs):
            i = x + c
            acc = f"v[{ACC+4*i}:{ACC+4*i+3}]"
            cin = "0" if first[i] else acc
            first[i] = False
            A(f"v_mfma_f32_16x16x32_bf16 {acc}, v[{s+4*x}:{s+4*x+3}], v[{s+32+4*c}:{s+32+4*c+3}], {cin}")
            if idx < len(nxt):
                A(nxt[idx])
    stamp()
    lh1 = a.newlabel("Bh1"); lj = a.newlabel("Bj")
    A("s_cmp_lg_u32 s30, 0")
    A(f"s_cbranch_scc1 {lh1}")
    for h in range(2):
        if h == 1: a.label(lh1)
        A("s_nop 7")
        snd = ACC + 16*(1-h); keep = ACC + 16*h
        for q in range(4):
            A(f"ds_write_b128 v61, v[{snd+4*q}:{snd+4*q+3}] offset:{1024*q}")
        A("s_waitcnt lgkmcnt(0)")
        A("s_barrier")
        for q in range(4):
            A(f"ds_read_b128 v[{96+4*q}:{99+4*q}], v60 offset:{1024*q}")
        for q in range(4):
            A(f"s_waitcnt lgkmcnt({3-q})")
            for r in range(4):
                A(f"v_add_f32 v{96+4*q+r}, v{96+4*q+r}, v{keep+4*q+r}")
            A(f"v_cvt_pk_bf16_f32 v{112+2*q}, v{96+4*q}, v{97+4*q}")
            A(f"v_cvt_pk_bf16_f32 v{113+2*q}, v{98+4*q}, v{99+4*q}")
        if h == 0: A(f"s_branch {lj}")
    a.label(lj)
    if iy == "conv": A("s_waitcnt vmcnt(0)")
    def moded(ins):
        l1 = a.newlabel("Bms"); l2 = a.newlabel("Bmj")
        A("s_cmp_lg_u64 s[6:7], 0")
        A(f"s_cbranch_scc1 {l1}")
        for x in ins:
            if not nomem: A(x)
        A(f"s_branch {l2}")
        a.label(l1)
        for x in ins: A(x + " sc1")
        a.label(l2)
    moded(["global_store_dwordx4 v22, v[112:115], s[22:23]", "global_store_dwordx4 v23, v[116:119], s[22:23]"])
    A("s_lshl_b32 s38, s25, 10")
    A(f"s_add_u32 s38, s38, {YFOFF}")
    A("s_lshl_b32 s39, s30, 9")
    A("s_add_u32 s39, s39, s38")
    A("s_and_b32 s52, s28, 63")
    A("s_lshl_b32 s52, s52, 3")
    A("s_add_u32 s39, s39, s52")
    A("v_mov_b32 v2, s39")
    A("s_lshr_b32 s39, s26, 4")
    A("s_lshl_b32 s39, s39, 9")
    A("s_add_u32 s39, s39, s38")
    A("s_lshl_b32 s52, s24, 7")
    A("s_add_u32 s39, s39, s52")
    A("v_lshl_add_u32 v3, v35, 3, s39")
    A("v_mov_b32 v28, s50")
    A("v_mov_b32 v29, s51")
    A("s_lshr_b32 s38, s26, 3")
    A("s_lshl_b32 s38, s38, 20")
    A("s_and_b32 s39, s26, 7")
    A("s_lshl_b32 s39, s39, 16")
    A("s_add_u32 s38, s38, s39")
    A("s_lshl_b32 s39, s25, 7")
    A("s_add_u32 s38, s38, s39")
    A("s_add_u32 s53, s38, 1024")
    A("s_lshl_b32 s39, s30, 19")
    A("s_add_u32 s38, s53, s39")
    A("s_lshl_b32 s39, s29, 15")
    A("s_add_u32 s38, s38, s39")
    A("v_lshrrev_b32 v4, 3, v1")
    A("v_lshlrev_b32 v4, 11, v4")
    A("v_and_b32 v5, 7, v1")
    A("v_lshl_add_u32 v4, v5, 4, v4")
    A("v_add_u32 v4, s38, v4")
    A("v_add_u32 v17, 0x4000, v4")
    A("s_add_u32 s52, s33, 4096")
    A("v_lshrrev_b32 v5, 3, v1")
    A("v_mul_u32_u24 v5, 144, v5")
    A("v_and_b32 v6, 7, v1")
    A("v_lshl_add_u32 v5, v6, 4, v5")
    A("v_add_u32 v5, s52, v5")
    A("v_lshl_add_u32 v6, v24, 3, v38")
    A("v_mul_u32_u24 v6, 144, v6")
    A("v_lshl_add_u32 v7, v39, 2, v37")
    A("v_lshl_add_u32 v6, v7, 3, v6")
    A("v_add_u32 v6, s52, v6")
    A("s_lshl_b32 s39, s24, 5")
    A("s_add_u32 s38, s53, s39")
    A("v_and_b32 v7, 1, v38")
    A("v_lshlrev_b32 v7, 8, v7")
    A("v_lshl_add_u32 v7, v39, 3, v7")
    A("v_lshrrev_b32 v16, 1, v38")
    A("v_lshl_add_u32 v7, v16, 2, v7")
    A("v_add_u32 v7, v7, v37")
    A("v_lshlrev_b32 v7, 11, v7")
    A("v_lshl_add_u32 v7, v24, 4, v7")
    A("v_add_u32 v7, s38, v7")
    A("v_add_u32 v16, 0x8000, v7")
    stamp()
    A("s_waitcnt vmcnt(0)")
    A("s_mov_b64 exec, 1")
    moded(["global_store_dwordx2 v2, v[28:29], s[42:43]"])
    A("s_mov_b64 exec, -1")
    A("s_mov_b32 s49, 0x40000")
    lf = a.newlabel("By"); lfd = a.newlabel("Bydone")
    a.label(lf)
    A("global_load_dwordx2 v[18:19], v3, s[42:43] sc1")
    A("s_waitcnt vmcnt(0)")
    A("v_cmp_ne_u64 vcc, s[50:51], v[18:19]")
    A(f"s_cbranch_vccz {lfd}")
    A("s_sub_u32 s49, s49, 1")
    A(f"s_cbranch_scc1 {lfd}")
    if ysleep: A(f"s_sleep {ysleep}")
    A(f"s_branch {lf}")
    a.label(lfd)
    stamp()
    A("global_load_dwordx4 v[8:11], v4, s[22:23] sc1")
    A("global_load_dwordx4 v[12:15], v17, s[22:23] sc1")
    for q in range(2):
        A(f"s_waitcnt vmcnt({1-q})")
        A(f"ds_write_b128 v5, v[{8+4*q}:{11+4*q}] offset:{8*144*q}")
    A("s_waitcnt lgkmcnt(0)")
    for q in range(2):
        for sec in range(2):
            A(f"ds_read_b64_tr_b16 v[{96+4*q+2*sec}:{97+4*q+2*sec}], v6 offset:{4*144*sec+64*q}")
    A("s_barrier")
    for q in range(2):
        A(f"s_waitcnt lgkmcnt({2-2*q})")
        A(f"global_store_dwordx4 v{7 if q == 0 else 16}, v[{96+4*q}:{99+4*q}], s[22:23] {outmod}")
    if stamps:
        stamp()
        A("s_waitcnt vmcnt(0)")
        stamp()
        n = nst[0]
        print("B stamps", n)
        assert n <= 15
        A("s_waitcnt lgkmcnt(0)")
        A("s_lshl_b32 s38, s36, 7")
        A(f"s_add_u32 s38, s38, {stamps}")
        A("v_mov_b32 v2, s38")
        for i in range(n):
            A(f"v_mov_b32 v4, s{64+2*i}")
            A(f"v_mov_b32 v5, s{65+2*i}")
            A(f"global_store_dwordx2 v2, v[4:5], s[42:43] offset:{8*i}")
        A("s_waitcnt vmcnt(0)")
    A("s_endpgm")
    ool()
```

```python
import sys
from asmlib import *
import genA7, genB7
STA, STB = 0x700000, 0x780000
def build(path, stamps=False, noA=False, noB=False, bfirst=True, **kw):
    a = Asm()
    def nonce_only():
        a("s_cmp_lg_u32 s2, 0"); a("s_cbranch_scc1 .Lexit")
        a("s_load_dwordx2 s[16:17], s[0:1], 112"); a("s_memrealtime s[70:71]"); a("s_waitcnt lgkmcnt(0)")
        a("s_or_b32 s70, s70, 1"); a("s_bitset1_b32 s71, 31"); a("v_mov_b32 v125, 0"); a("v_mov_b32 v126, s70"); a("v_mov_b32 v127, s71"); a("v_cmp_eq_u32 vcc, 0, v0"); a("s_and_saveexec_b64 s[4:5], vcc")
        a("global_store_dwordx2 v125, v[126:127], s[16:17] sc1"); a("s_endpgm")
    def eA(first):
        if noA:
            if first: nonce_only()
            else: a("s_endpgm")
        else: genA7.emit_A(a, stamps=(STA if stamps else None), nonce=first, **kw.get("A", {}))
    def eB(first):
        if noB:
            if first: nonce_only()
            else: a("s_endpgm")
        else: genB7.emit_B(a, stamps=(STB if stamps else None), nonce=first, **kw.get("B", {}))
    a("s_cmp_ge_u32 s2, 256")
    a("s_cbranch_scc1 .LB")
    (eB if bfirst else eA)(True)
    a.label(".LB")
    a("s_cmp_ge_u32 s2, 512")
    a("s_cbranch_scc1 .Lexit")
    a("s_sub_u32 s2, s2, 256")
    (eA if bfirst else eB)(False)
    a.label(".Lexit")
    a("s_endpgm")
    k = kernel_text(NAME + "_kernel", a.text(), vgpr=256, sgpr=102)
    hdr = "".join(l for l in open("cdna_kernels/" + NAME + ".s.ref") if l.startswith(";") and "@launch" not in l)
    open(path, "w").write(file_text([(None, 512, 256, 81920)], [k], header=hdr))
if __name__ == "__main__":
    Ak = dict(prio=3, wo2n=4, pfl=3, kap=4)
    Bk = dict(pfl=5, i1=10, i2=120)
    build("k7v.s", A=Ak, B=Bk, bfirst=False)
    build("tF7.s", stamps=True, A=dict(Ak, sp2=2), B=dict(Bk, iy="conv"), bfirst=False)
    build("k7a.s", A=Ak, B=dict(Bk, iy="conv"), bfirst=False)
    build("k7b.s", A=dict(Ak, sp2=2), B=dict(Bk, iy="conv"), bfirst=False)
    build("k7c.s", A=dict(Ak, sp2=3, nqa=4, sp1=60, sp3=10), B=dict(Bk, iy="conv"), bfirst=False)
    build("k7d.s", A=dict(Ak, sp2=2), B=dict(Bk, iy="conv", pfl=7), bfirst=False)
```
